```python
import torch

def _softmax(x, axis=-1):
    return torch.softmax(x, dim=axis)

def _gelu(x):
    return torch.nn.functional.gelu(x, approximate='tanh')

def _silu(x):
    return torch.nn.functional.silu(x)

def _sigmoid(x):
    return torch.sigmoid(x)

def _layernorm(x, axis=-1, eps=1e-05):
    m = x.mean(dim=axis, keepdim=True)
    v = x.var(dim=axis, keepdim=True, unbiased=False)
    return (x - m) / torch.sqrt(v + eps)

def _scatter_add(tgt, idx, src, axis=0):
    return tgt.clone().index_add_(axis, idx, src)

def _segment_sum(src, seg, n):
    out = torch.zeros((n,) + src.shape[1:], dtype=src.dtype)
    return out.index_add_(0, seg, src)

def _pad(x, pw):
    flat = tuple((v for pair in reversed(pw) for v in pair))
    return torch.nn.functional.pad(x, flat)
kernel_name = 'adaLN_cond__gqa_block_cached__mixer_channel_mlp__prompt'

def setup_inputs():

    _w = lambda a: (lambda t: t.to(torch.bfloat16) if t.is_floating_point() else t)(torch.as_tensor(a))

    def _A_setup():
        B, Sq, D = (1, 2048, 448)
        Hq, Hkv, Sk, Dh = (16, 8, 2048, 256)
        assert Hq % Hkv == 0, (Hq, Hkv)
        return {'x': _w((lambda *s: torch.randn(*s, dtype=torch.bfloat16) * 0.1)(B, Sq, D)), 'k_cache': _w((lambda *s: torch.randn(*s, dtype=torch.bfloat16) * 0.8)(B, Hkv, Sk, Dh)), 'v_cache': _w((lambda *s: torch.randn(*s, dtype=torch.bfloat16) * 1.6)(B, Hkv, Sk, Dh)), 'wq': _w((lambda *s: torch.randn(*s, dtype=torch.bfloat16) * 0.8)(D, Hq * Dh) * D ** (-0.5)), 'wo': _w((lambda *s: torch.randn(*s, dtype=torch.bfloat16) * 1.6)(Hq * Dh, D) * (Hq * Dh) ** (-0.5))}
    _A_in = _A_setup()

    def _B_setup():
        B, S, D, F = (1, 2048, 448, 1792)
        return {'x': _w((lambda *s: torch.randn(*s, dtype=torch.bfloat16) * 0.1)(B, S, D)), 'w1': _w((lambda *s: torch.randn(*s, dtype=torch.bfloat16) * 3.2)(D, F) * D ** (-0.5)), 'b1': _w((lambda *s: torch.randn(*s, dtype=torch.bfloat16) * 3.2)(F)), 'w2': _w((lambda *s: torch.randn(*s, dtype=torch.bfloat16) * 3.2)(F, D) * F ** (-0.5)), 'b2': _w((lambda *s: torch.randn(*s, dtype=torch.bfloat16) * 3.2)(D))}
    _B_in = _B_setup()
    return {'A_x': _A_in['x'], 'A_k_cache': _A_in['k_cache'], 'A_v_cache': _A_in['v_cache'], 'A_wq': _A_in['wq'], 'A_wo': _A_in['wo'], 'B_x': _B_in['x'], 'B_w1': _B_in['w1'], 'B_b1': _B_in['b1'], 'B_w2': _B_in['w2'], 'B_b2': _B_in['b2'], 'c': _w((lambda *s: torch.randn(*s, dtype=torch.bfloat16) * 0.2)(1, 448) * 8.0), 'w_mod': _w((lambda *s: torch.randn(*s, dtype=torch.bfloat16) * 0.2)(448, 6 * 448) * 448 ** (-0.5) * 8.0)}

def reference(A_x, A_k_cache, A_v_cache, A_wq, A_wo, B_x, B_w1, B_b1, B_w2, B_b2, c, w_mod):

    def _A_ref(x, k_cache, v_cache, wq, wo):
        B, Sq, D = x.shape
        Hq, Dh = (16, 256)
        Hkv = k_cache.shape[1]
        rep = Hq // Hkv
        q = (lambda x, *d: x.permute(*d))((x @ wq).reshape(B, Sq, Hq, Dh), 0, 2, 1, 3)
        k = (lambda x, n, axis: torch.repeat_interleave(x, n, dim=axis))(k_cache, rep, axis=1)
        v = (lambda x, n, axis: torch.repeat_interleave(x, n, dim=axis))(v_cache, rep, axis=1)
        scores = torch.einsum('bhqd,bhkd->bhqk', q, k) * Dh ** (-0.5)
        p = _softmax(scores, axis=-1)
        o = torch.einsum('bhqk,bhkd->bhqd', p, v)
        return (lambda x, *d: x.permute(*d))(o, 0, 2, 1, 3).reshape(B, Sq, Hq * Dh) @ wo

    def _B_ref(x, w1, b1, w2, b2):
        y = _layernorm(x, axis=-1)
        h = _gelu(torch.einsum('bsd,df->bsf', y, w1) + b1)
        return torch.einsum('bsf,fd->bsd', h, w2) + b2
    x = A_x
    mod = (_silu(c) @ w_mod).reshape(c.shape[0], 6, 1, -1)
    sa, ca, ga, sb, cb, gb = (mod[:, 0].clone(), mod[:, 1].clone(), mod[:, 2].clone(), mod[:, 3].clone(), mod[:, 4].clone(), mod[:, 5].clone())
    h = _layernorm(x, axis=-1) * (1 + ca) + sa
    x = x + ga * _A_ref(h, A_k_cache, A_v_cache, A_wq, A_wo)
    h = _layernorm(x, axis=-1) * (1 + cb) + sb
    x = x + gb * _B_ref(h, B_w1, B_b1, B_w2, B_b2)
    return x
```

```python
import re

REG_RE = re.compile(r'\b([vas])\[(\d+):(\d+)\]|\b([vas])(\d+)\b|\b(vcc|m0|exec|scc)\b')

def regs_of(op):
    out = []
    for m in REG_RE.finditer(op):
        if m.group(1):
            out += [(m.group(1), i) for i in range(int(m.group(2)), int(m.group(3)) + 1)]
        elif m.group(4):
            out.append((m.group(4), int(m.group(5))))
        else:
            out.append((m.group(6), 0))
    return out

TRANS = ('v_exp_f32', 'v_log_f32', 'v_rcp_f32', 'v_rsq_f32', 'v_sqrt_f32', 'v_sin_f32', 'v_cos_f32')

class I:
    __slots__ = ('text', 'op', 'kind', 'rd', 'wr', 'tag', 'srcc', 'passes', 'wide', 'ab', 'note', 'dpp')
    def __init__(self, text, tag=None, note=None):
        self.text = text; self.tag = tag; self.note = note
        self.rd = set(); self.wr = set(); self.srcc = set(); self.ab = set(); self.passes = 0; self.wide = False
        self.dpp = False
        t = text.split(';')[0].strip()
        if t.endswith(':'):
            self.op = 'label'; self.kind = 'label'; return
        if t.startswith('.') or t == '':
            self.op = 'dir'; self.kind = 'label'; return
        parts = t.split(None, 1)
        op = parts[0]; self.op = op
        rest = parts[1] if len(parts) > 1 else ''
        ops = [o.strip() for o in rest.split(',')] if rest else []
        R = lambda k: set(regs_of(ops[k]))
        allr = lambda a: set().union(*[set(regs_of(o)) for o in ops[a:]]) if len(ops) > a else set()
        if op.startswith('v_mfma'):
            self.kind = 'mfma'; self.wr = R(0); self.ab = R(1) | R(2); self.srcc = R(3); self.rd = self.ab | self.srcc
            self.passes = 4 if '16x16x32' in op else 8
        elif op.startswith('v_cmp'):
            self.kind = 'valu'; self.wr = R(0); self.rd = allr(1)
        elif op.startswith('v_permlane'):
            self.kind = 'valu'; self.wr = allr(0); self.rd = allr(0)
        elif op.startswith('v_'):
            self.kind = 'trans' if re.sub(r'_e(32|64)$', '', op) in TRANS else 'valu'
            self.wr = R(0); self.rd = allr(1)
            if op.startswith(('v_fmac', 'v_pk_fmac', 'v_dot2c')): self.rd |= self.wr
            if op.startswith('v_cndmask') and len(ops) == 3: self.rd.add(('vcc', 0))
            if 'row_' in t or 'quad_perm' in t or 'wave_' in t:
                self.dpp = True; self.rd |= self.wr
        elif op.startswith('ds_'):
            if op.startswith(('ds_read', 'ds_bpermute', 'ds_permute', 'ds_swizzle')):
                self.kind = 'dsr'; self.wr = R(0); self.rd = allr(1)
            else:
                self.kind = 'dsw'; self.rd = allr(0)
        elif op.startswith(('buffer_load', 'global_load')):
            if re.search(r'\blds\b', t) or '_lds_' in op:
                self.kind = 'dma'; self.rd = allr(0) | {('m0', 0)}
            else:
                self.kind = 'vml'; self.wr = R(0); self.rd = allr(1)
        elif op.startswith(('buffer_store', 'global_store', 'buffer_atomic', 'global_atomic')):
            self.kind = 'vms'; self.rd = allr(0)
            if 'atomic' in op and 'sc0' in t:
                self.kind = 'vml'; self.wr = R(0)
            self.wide = op.endswith(('x3', 'x4'))
            if self.wide: self.srcc = R(0) if op.startswith('buffer') else R(1)
        elif op.startswith(('buffer_wbl2', 'buffer_inv')):
            self.kind = 'vms'
        elif op.startswith(('s_load', 's_memtime', 's_memrealtime', 's_buffer_load')):
            self.kind = 'smem'; self.wr = R(0); self.rd = allr(1)
        elif op in ('s_waitcnt', 's_barrier', 's_nop', 's_endpgm', 's_setprio', 's_sleep') or op.startswith(('s_branch', 's_cbranch')):
            self.kind = 'ctl'
        elif op.startswith('s_cmp') or op.startswith('s_bitcmp'):
            self.kind = 'salu'; self.rd = allr(0); self.wr = {('scc', 0)}
        elif op.startswith('s_'):
            self.kind = 'salu'; self.wr = R(0); self.rd = allr(1)
            if 'saveexec' in op: self.wr.add(('exec', 0))
        elif op == 'WAITTAG':
            self.kind = 'waittag'
        else:
            raise ValueError('unknown op ' + text)
    def states(self):
        if self.kind in ('label', 'waittag'): return 0
        if self.op == 's_nop': return int(self.text.split()[1].rstrip(';'), 0) + 1
        return 1

class Seq:
    def __init__(self): self.l = []
    def __call__(self, text, tag=None, note=None):
        for line in text.strip().split('\n'):
            line = line.strip()
            if line: self.l.append(I(line, tag, note))
    def waittag(self, tag):
        i = I('WAITTAG'); i.tag = tag; self.l.append(i)
    def extend(self, other): self.l.extend(other.l if isinstance(other, Seq) else other)

class Prog:
    def __init__(self, name): self.name = name; self.segs = []
    def straight(self):
        s = Seq(); self.segs.append(('s', s)); return s
    def loop(self):
        s = Seq(); self.segs.append(('l', s)); return s
    def outofline(self):
        s = Seq(); self.segs.append(('x', s)); return s

    def _linear(self):
        lin = []
        for kind, s in self.segs:
            if kind == 's': lin += s.l
            elif kind == 'l': lin += s.l + s.l + s.l
        return lin

    def insert_waits(self):
        pre = {}
        def run(lin):
            changed = False
            vm = []; lg = []
            for ins in lin:
                key = id(ins)
                def apply(v, l):
                    if v is not None: del vm[:max(0, len(vm) - v)]
                    if l is not None: del lg[:max(0, len(lg) - l)]
                if key in pre: apply(*pre[key])
                if ins.op == 's_waitcnt':
                    m = re.search(r'vmcnt\((\d+)\)', ins.text); m2 = re.search(r'lgkmcnt\((\d+)\)', ins.text)
                    apply(int(m.group(1)) if m else None, int(m2.group(1)) if m2 else None)
                    continue
                needv = needl = None
                touched = ins.rd | ins.wr
                if ins.kind == 'waittag':
                    for k, (w, t) in enumerate(vm):
                        if t == ins.tag: needv = len(vm) - 1 - k
                else:
                    for k, (w, t) in enumerate(vm):
                        if w & touched: needv = len(vm) - 1 - k
                    for k, (w, t) in enumerate(lg):
                        if w & touched: needl = len(lg) - 1 - k if t != 'smem' else 0
                    if needl is not None and any(t == 'smem' for w, t in lg): needl = 0
                if needv is not None or needl is not None:
                    if needv is not None: needv = min(needv, 63)
                    if needl is not None: needl = min(needl, 15)
                    old = pre.get(key, [None, None])
                    mn = lambda a, b: b if a is None else (a if b is None else min(a, b))
                    pre[key] = [mn(old[0], needv), mn(old[1], needl)]
                    changed = True
                    apply(*pre[key])
                if ins.kind in ('vml', 'vms', 'dma'): vm.append((set(ins.wr), ins.tag))
                elif ins.kind in ('dsr', 'dsw'): lg.append((set(ins.wr), ins.tag))
                elif ins.kind == 'smem': lg.append((set(ins.wr), 'smem')); lg.append((set(ins.wr), 'smem'))
                assert len(vm) <= 63 or True
            return changed
        lin = self._linear()
        for _ in range(10):
            if not run(lin): break
        else: raise RuntimeError('wait insertion did not converge')
        for kind, s in self.segs:
            if kind == 'x':
                for _ in range(10):
                    if not run(s.l): break
        for kind, s in self.segs:
            new = []
            for ins in s.l:
                if id(ins) in pre:
                    v, l = pre[id(ins)]
                    t = 's_waitcnt' + (f' vmcnt({v})' if v is not None else '') + (f' lgkmcnt({l})' if l is not None else '')
                    new.append(I(t))
                if ins.kind != 'waittag': new.append(ins)
            s.l = new

    @staticmethod
    def need(p, c):
        n = 0
        pv = p.kind in ('valu', 'trans')
        cv = c.kind in ('valu', 'trans')
        vw = {r for r in p.wr if r[0] in 'va' and r[0] != 'vcc'}
        vw = {r for r in p.wr if r[0] in ('v', 'a')}
        sw = {r for r in p.wr if r[0] in ('s', 'vcc')}
        if pv and c.kind == 'mfma' and (vw & c.rd): n = max(n, 2)
        if p.kind == 'mfma':
            big = {4: 8, 8: 12}[p.passes]
            if c.kind == 'mfma':
                if p.wr & c.ab: n = max(n, big)
                if p.wr & c.srcc and not (p.wr == c.srcc and p.passes == c.passes): n = max(n, {4: 6, 8: 10}[p.passes])
                if p.wr & c.wr and not (p.wr == c.srcc): n = max(n, big)
            elif cv or c.kind in ('dsr', 'dsw', 'vml', 'vms', 'dma'):
                if p.wr & (c.rd | c.wr): n = max(n, big)
            if cv and (p.srcc & c.wr): n = max(n, {4: 3, 8: 7}[p.passes])
            if c.kind in ('dsr', 'vml') and (p.srcc & c.wr): n = max(n, {4: 3, 8: 7}[p.passes])
        if p.kind == 'trans' and cv and (vw & c.rd): n = max(n, 1)
        if pv and sw:
            if cv and (sw & c.rd): n = max(n, 4 if c.op.startswith(('v_readlane', 'v_writelane')) else 2)
            if c.kind in ('vml', 'vms', 'dma') and (sw & c.rd): n = max(n, 5)
        if pv and vw:
            if c.op.startswith(('v_readfirstlane', 'v_readlane')) and (vw & c.rd): n = max(n, 1)
            if c.op.startswith('v_permlane') and (vw & c.rd): n = max(n, 2)
            if c.dpp and (vw & c.rd): n = max(n, 2)
        if p.kind == 'salu' and ('m0', 0) in p.wr and c.kind == 'dma': n = max(n, 1)
        if p.kind == 'vms' and p.wide and (p.srcc & c.wr): n = max(n, 2)
        if p.kind == 'salu' and ('exec', 0) in p.wr and c.dpp: n = max(n, 5)
        return n

    def fix_hazards(self, verbose=True):
        log = []
        def scan(lin):
            for j, c in enumerate(lin):
                if c.kind in ('label', 'ctl'): continue
                dist = 0
                for k in range(j - 1, max(-1, j - 30), -1):
                    p = lin[k]
                    if dist >= 20: break
                    n = self.need(p, c)
                    if n > dist: return c, n - dist, p
                    dist += p.states()
            return None
        def fix(getlin):
            while True:
                r = scan(getlin())
                if r is None: break
                c, n, p = r
                for kind, s in self.segs:
                    for idx, ins in enumerate(s.l):
                        if ins is c:
                            s.l.insert(idx, I(f's_nop {n-1}'))
                            log.append((kind, n, p.text, c.text)); break
                    else: continue
                    break
        fix(self._linear)
        for kind, s in self.segs:
            if kind == 'x': fix(lambda s=s: s.l)
        if verbose:
            for k, n, p, c in log:
                if k == 'l': print(f'[{self.name}] loop nop {n}: {p}  ->  {c}')
        return log

    def text(self):
        out = []
        for kind, s in self.segs:
            for ins in s.l:
                t = ins.text
                out.append(t if ins.kind == 'label' else '    ' + t)
        return '\n'.join(out) + '\n'

    def finalize(self, verbose=True):
        self.insert_waits()
        self.fix_hazards(verbose)
        return self.text()

def kernel_header(name):
    return f'.globl {name}\n.p2align 8\n.type {name},@function\n{name}:\n'

def kernel_desc(name, vgpr, sgpr, accum):
    return (f'.p2align 6\n.amdhsa_kernel {name}\n  .amdhsa_next_free_vgpr {vgpr}\n  .amdhsa_next_free_sgpr {sgpr}\n'
            f'  .amdhsa_accum_offset {accum}\n  .amdhsa_group_segment_fixed_size 0\n  .amdhsa_kernarg_size 120\n'
            f'  .amdhsa_user_sgpr_count 2\n  .amdhsa_user_sgpr_kernarg_segment_ptr 1\n'
            f'  .amdhsa_system_sgpr_workgroup_id_x 1\n.end_amdhsa_kernel\n')

def interleave(seq, mfmas, fillers, cap=2):
    G = len(mfmas)
    gaps = [[] for _ in range(G)]
    load = [0.0] * G
    last = {}
    for f in fillers:
        ch = f.get('chain')
        g = max(f.get('lo', 0), last.get(ch, 0))
        hi = f.get('hi', G - 1)
        c = f.get('c', 1)
        while g < hi and load[g] + c > cap: g += 1
        g = min(g, G - 1)
        gaps[g].append(f); load[g] += c
        if ch is not None: last[ch] = g
    for g in range(G):
        seq(mfmas[g])
        for f in gaps[g]:
            if f.get('waittag') is not None: seq.waittag(f['waittag']); continue
            ts = f['t'] if isinstance(f['t'], list) else [f['t']]
            for t in ts: seq(t, tag=f.get('tag'))
    return load
```

```python
from asmlib import *

KA = dict(x=0, k=8, v=16, wq=24, wo=32, bx=40, w1=48, b1=56, w2=64, b2=72, c=80, wmod=88, out=96, dbg=104, ws=112)
SZ = dict(x=2048*448*2, k=8*2048*256*2, v=8*2048*256*2, wq=448*4096*2, wo=4096*448*2, w1=448*1792*2, b1=1792*2,
          w2=1792*448*2, b2=448*2, c=448*2, wmod=448*2688*2, out=2048*448*2, dbg=256)

WS_MOD = 0
WS_Y = 1 << 16
WS_X2 = WS_Y + (2 << 20)
WS_P1 = WS_X2 + (4 << 20)
WS_P2 = WS_P1 + (16 << 20)
WS_DBG = WS_P2 + (16 << 20)
WS_SIZE = 268435456

def srd(S, d, ptr_lo, nbytes, add=None):
    if add:
        S(f's_add_u32 s{d}, s{ptr_lo}, {add}')
        S(f's_addc_u32 s{d+1}, s{ptr_lo+1}, 0')
    else:
        S(f's_mov_b32 s{d}, s{ptr_lo}')
        S(f's_mov_b32 s{d+1}, s{ptr_lo+1}')
    S(f's_mov_b32 s{d+2}, {nbytes}')
    S(f's_mov_b32 s{d+3}, 0x00020000')
```

```python
from common import *

def gen_k1():
    P = Prog('k1'); S = P.straight()
    S('s_cmp_ge_u32 s2, 84')
    S('s_cbranch_scc1 L_k1_end')
    S(f's_load_dwordx4 s[4:7], s[0:1], {KA["c"]}')
    S(f's_load_dwordx2 s[8:9], s[0:1], {KA["ws"]}')
    S('v_and_b32 v1, 3, v0')
    S('v_lshrrev_b32 v2, 2, v0')
    S('s_waitcnt lgkmcnt(0)')
    srd(S, 12, 4, SZ['c']); srd(S, 16, 6, SZ['wmod']); srd(S, 20, 8, 6*448*4, add=WS_MOD or None)
    S('v_lshlrev_b32 v3, 1, v2')
    S('v_mul_u32_u24 v4, 5376, v2')
    S('v_lshl_add_u32 v4, v1, 4, v4')
    S('s_lshl_b32 s3, s2, 6')
    for k in range(7):
        S(f'buffer_load_ushort v{8+k}, v3, s[12:15], 0 offen offset:{128*k}')
    for k in range(7):
        S(f's_add_u32 s24, s3, {k*64*5376}')
        S(f'buffer_load_dwordx4 v[{16+4*k}:{19+4*k}], v4, s[16:19], s24 offen')
    for j in range(8): S(f'v_mov_b32 v{48+j}, 0')
    for k in range(7):
        c = 8 + k
        S(f'v_lshlrev_b32 v{c}, 16, v{c}')
        S(f'v_mul_f32 v5, 0xbfb8aa3b, v{c}')
        S('v_exp_f32 v5, v5')
        S('v_add_f32 v5, 1.0, v5')
        S('v_rcp_f32 v5, v5')
        S(f'v_mul_f32 v5, v5, v{c}')
        S('v_cvt_pk_bf16_f32 v5, v5, v5')
        S(f'v_lshlrev_b32 v{c}, 16, v5')
    for k in range(7):
        for j in range(4):
            w = 16 + 4*k + j
            S(f'v_lshlrev_b32 v6, 16, v{w}')
            S(f'v_and_b32 v7, 0xffff0000, v{w}')
            S(f'v_fmac_f32 v{48+2*j}, v6, v{8+k}')
            S(f'v_fmac_f32 v{49+2*j}, v7, v{8+k}')
    S('v_mul_u32_u24 v5, 144, v2')
    S('v_lshl_add_u32 v5, v1, 5, v5')
    S('ds_write_b128 v5, v[48:51]')
    S('ds_write_b128 v5, v[52:55] offset:16')
    S('v_and_b32 v6, 31, v0')
    S('v_lshrrev_b32 v7, 5, v0')
    S('v_mul_u32_u24 v8, 1152, v7')
    S('v_lshl_add_u32 v8, v6, 2, v8')
    S('s_waitcnt lgkmcnt(0)')
    S('s_barrier')
    for k in range(8): S(f'ds_read_b32 v{16+k}, v8 offset:{144*k}')
    for k in range(1, 8): S(f'v_add_f32 v16, v16, v{16+k}')
    S('v_lshlrev_b32 v9, 2, v0')
    S('ds_write_b32 v9, v16 offset:9216')
    S('v_lshlrev_b32 v10, 2, v6')
    S('s_waitcnt lgkmcnt(0)')
    S('s_barrier')
    for k in range(8): S(f'ds_read_b32 v{24+k}, v10 offset:{9216+128*k}')
    for k in range(1, 8): S(f'v_add_f32 v24, v24, v{24+k}')
    S('v_cvt_pk_bf16_f32 v24, v24, v24')
    S('v_lshlrev_b32 v24, 16, v24')
    S('v_add_f32 v25, 1.0, v24')
    S('v_cvt_pk_bf16_f32 v25, v25, v25')
    S('v_lshlrev_b32 v25, 16, v25')
    S('s_sub_u32 s25, s2, 14')
    S('s_cmp_lt_u32 s25, 14')
    S('s_cselect_b32 s26, 1, 0')
    S('s_sub_u32 s25, s2, 56')
    S('s_cmp_lt_u32 s25, 14')
    S('s_cselect_b32 s26, 1, s26')
    S('s_cmp_eq_u32 s26, 1')
    S('s_cselect_b64 vcc, -1, 0')
    S('v_cndmask_b32 v24, v24, v25, vcc')
    S('s_lshl_b32 s27, s2, 7')
    S('v_cmp_gt_u32 vcc, 32, v0')
    S('s_and_saveexec_b64 s[28:29], vcc')
    S('s_cbranch_execz L_k1_end')
    S('buffer_store_dword v24, v10, s[20:23], s27 offen')
    S('L_k1_end:')
    S('s_endpgm')
    return P.finalize(), dict(name='k1_kernel', grid=84, block=256, lds=10240, vgpr=64, sgpr=32, accum=64)
```

```python
from common import *

SLOT = 32768
QSCALE = 1.4426950408889634 / 16.0
import struct
def f32(x): return '0x%08x' % struct.unpack('<I', struct.pack('<f', x))[0]

sG, sRB, sW, sP, sS = 3, 4, 5, 6, 7
SX, SK, SV, SWQ, SWO, SMOD, SP1 = 8, 12, 16, 20, 24, 28, 32
sT0, sT1, sT2, sT3 = 36, 37, 38, 39
sSL = [40, 41, 42, 43, 44]
sKT, sKT2, sVT, sVT2 = 45, 46, 47, 48
sDK, sDV = 49, 50
sCNT = 51
sTHR = 52
sW4K = 53
sRET = 54
sPTR = 56
SDBG = 72

KA_ = [0, 1]; VA_ = [2, 3, 4, 5]; DK, DV = 6, 7
L_ = 8; PS = 12; S_ = 16; P_ = 48; NM = 80; FR = 96; TMP = 120; Q_ = 128
def Sr(kb, qb): return S_ + (kb*4+qb)*4
def Pr(b, qb): return P_ + (b*4+qb)*4
def Qr(qb, st): return Q_ + (qb*8+st)*4
def Or(j, qb): return (j*4+qb)*4
def vr(b, n=4): return f'v[{b}:{b+n-1}]'
def ar(b, n=4): return f'a[{b}:{b+n-1}]'
MF = 'v_mfma_f32_16x16x32_bf16'

RING = [0,1,2,3,4,5]*2 + [0,1,2,3,4]*4
AHEAD = 4
def FRr(f): return FR + 4*RING[f % 32]

def allreduce_kg(S, x, t, op):
    S(f'v_mov_b32 v{t}, v{x}')
    S(f'v_permlane16_swap_b32 v{x}, v{t}')
    S(f'{op} v{x}, v{x}, v{t}')
    S(f'v_mov_b32 v{t}, v{x}')
    S(f'v_permlane32_swap_b32 v{x}, v{t}')
    S(f'{op} v{x}, v{x}, v{t}')

def k_read(f):
    kb, st = f // 8, f % 8
    return [f'ds_read_b128 {vr(FRr(f))}, v{KA_[st & 1]} offset:{kb*8192 + (st >> 1)*1024}']
def v_read(f):
    j = f - 16
    cg, jj = j >> 2, j & 3
    b = FRr(f)
    return [f'ds_read_b64_tr_b16 {vr(b,2)}, v{VA_[jj]} offset:{cg*1024}',
            f'ds_read_b64_tr_b16 {vr(b+2,2)}, v{VA_[jj]} offset:{8192 + cg*1024}']
def frag_read(f): return k_read(f % 32) if (f % 32) < 16 else v_read(f % 32)

def dma_kv(which, slot_s, n):
    u, cg = n >> 2, n & 3
    if which == 'K':
        gcg = cg; srd_, vo, so = SK, DK, (sKT, sKT2)[u]
    else:
        gcg = cg ^ (2 * u); srd_, vo, so = SV, DV, (sVT, sVT2)[u]
    return [f's_add_u32 m0, s{slot_s}, {u*16384 + cg*1024 - gcg*128}',
            f'buffer_load_dwordx4 v{vo}, s[{srd_}:{srd_+3}], s{so} offen offset:{gcg*128} lds']

def mfma_A(first_c=None):
    out = []
    for kb in range(2):
        for st in range(8):
            f = kb*8 + st
            for qb in range(4):
                c = vr(Sr(kb, qb)) if st else (first_c if first_c is not None else vr(NM + 4*qb))
                out.append(f'{MF} {vr(Sr(kb,qb))}, {vr(FRr(f))}, {vr(Qr(qb,st))}, {c}')
    return out
def mfma_B(buf):
    out = []
    for j in range(16):
        for qb in range(4):
            out.append(f'{MF} {ar(Or(j,qb))}, {vr(FRr(16+j))}, {vr(Pr(buf,qb))}, {ar(Or(j,qb))}')
    return out

def softmax_ops(buf, kb, qb, tbase):
    s = Sr(kb, qb); t = [TMP + ((tbase + r) % 8) for r in range(4)]
    o = []
    o.append((f'v_exp_f32 v{t[0]}, v{s}', 2))
    o.append((f'v_exp_f32 v{t[1]}, v{s+1}', 2))
    o.append((f'v_exp_f32 v{t[2]}, v{s+2}', 2))
    if kb == 0: o.append((f'v_add_f32 v{PS+qb}, v{t[0]}, v{t[1]}', 1))
    else:
        o.append((f'v_add_f32 v{PS+qb}, v{PS+qb}, v{t[0]}', 1))
    o.append((f'v_cvt_pk_bf16_f32 v{Pr(buf,qb)+2*kb}, v{t[0]}, v{t[1]}', 1))
    o.append((f'v_exp_f32 v{t[3]}, v{s+3}', 2))
    if kb == 1: o.append((f'v_add_f32 v{PS+qb}, v{PS+qb}, v{t[1]}', 1))
    o.append((f'v_add_f32 v{PS+qb}, v{PS+qb}, v{t[2]}', 1))
    o.append((f'v_cvt_pk_bf16_f32 v{Pr(buf,qb)+2*kb+1}, v{t[2]}, v{t[3]}', 1))
    o.append((f'v_add_f32 v{PS+qb}, v{PS+qb}, v{t[3]}', 1))
    return o

def renorm(S, buf, first):
    mx, t, f = TMP, TMP+1, TMP+2
    for qb in range(4):
        a, b = Sr(0, qb), Sr(1, qb)
        S(f'v_max3_f32 v{mx}, v{a}, v{a+1}, v{a+2}')
        S(f'v_max3_f32 v{mx}, v{mx}, v{a+3}, v{b}')
        S(f'v_max3_f32 v{mx}, v{mx}, v{b+1}, v{b+2}')
        S(f'v_max_f32 v{mx}, v{mx}, v{b+3}')
        allreduce_kg(S, mx, t, 'v_max_f32')
        if first:
            for r in range(4): S(f'v_sub_f32 v{NM+4*qb+r}, 0, v{mx}')
        else:
            S(f'v_max_f32 v{mx}, 0, v{mx}')
            for r in range(4): S(f'v_sub_f32 v{NM+4*qb+r}, v{NM+4*qb+r}, v{mx}')
            S(f'v_sub_f32 v{f}, 0, v{mx}')
            S(f'v_exp_f32 v{f}, v{f}')
            S(f'v_mul_f32 v{L_+qb}, v{L_+qb}, v{f}')
            for j in range(16):
                for r in range(4):
                    S(f'v_accvgpr_read_b32 v{TMP+4+r}, a{Or(j,qb)+r}')
                for r in range(4):
                    S(f'v_mul_f32 v{TMP+4+r}, v{TMP+4+r}, v{f}')
                for r in range(4):
                    S(f'v_accvgpr_write_b32 a{Or(j,qb)+r}, v{TMP+4+r}')
        for kb in range(2):
            for r in range(4):
                S(f'v_sub_f32 v{Sr(kb,qb)+r}, v{Sr(kb,qb)+r}, v{mx}')
        for kb in range(2):
            for txt, c in softmax_ops(buf, kb, qb, 4): S(txt)

def iteration(S, par, roles, dma1, dma2, doA=True, nextK=True, label=None):
    KR, VR, KN, D1, D2 = roles
    m = (mfma_A() if doA else []) + mfma_B(par)
    off = 0 if doA else -64
    G = len(m)
    F = []
    for f in range(0 if doA else 16, 32):
        tgt = f + AHEAD
        if tgt >= 32 and not nextK: continue
        if tgt >= 32 and nextK == 'V':
            tgt = tgt + 16 - 0
            continue
        g = f*4 + off
        if tgt == 32:
            F.append(dict(waittag='V', lo=g, hi=g, c=1, chain='rd'))
            F.append(dict(t='s_barrier', lo=g, hi=g, c=1, chain='rd'))
        for k, t in enumerate(frag_read(tgt)):
            F.append(dict(t=t, lo=g + k, hi=g + k, c=1, chain='rd'))
        if tgt == 15:
            F.append(dict(t=f's_sub_u32 s{sDK}, s{KN}, s{KR}', lo=g+1, c=1, chain='ka'))
            for a in KA_: F.append(dict(t=f'v_add_u32 v{a}, s{sDK}, v{a}', lo=g+1, c=1, chain='ka'))
        if tgt == 31:
            F.append(dict(t=f's_sub_u32 s{sDV}, s{D1}, s{VR}', lo=g+2, c=1, chain='va'))
            for a in VA_: F.append(dict(t=f'v_add_u32 v{a}, s{sDV}, v{a}', lo=g+2, c=1, chain='va'))
    for f in range(0 if doA else 16, 32):
        g = f*4 + 3 + off
        F.append(dict(t=[], lo=g, hi=g, c=1))
    groups = dma1 + dma2
    if groups:
        span = (32 - AHEAD)*4 + off - 4
        for k, gr in enumerate(groups):
            g = 2 + (k * span) // len(groups)
            g = (g // 4) * 4 + 2
            F.append(dict(t=gr['pre'], lo=g-1, hi=g-1, c=len(gr['pre'])))
            F.append(dict(t=gr['t'], lo=g, hi=g, c=2, tag=gr['tag']))
    if doA:
        tb = 0
        for kb in range(2):
            for qb in range(4):
                lo = kb*32 + 28 + qb + 5
                for txt, c in softmax_ops(par ^ 1, kb, qb, tb):
                    F.append(dict(t=txt, lo=lo, c=c, chain='sm'))
                tb += 4
        F.append(dict(t=f'v_max3_f32 v{TMP}, v{PS}, v{PS+1}, v{PS+2}', c=1, chain='sm'))
        F.append(dict(t=f'v_max_f32 v{TMP}, v{TMP}, v{PS+3}', c=1, chain='sm'))
        F.append(dict(t=f'v_cmp_nge_f32 vcc, s{sTHR}, v{TMP}', c=1, chain='sm'))
    load = interleave(S, m, F, cap=2)
    if doA:
        S(f's_cbranch_vccnz L_rare_{label}')
        S(f'L_back_{label}:')
        for qb in range(4): S(f'v_add_f32 v{L_+qb}, v{L_+qb}, v{PS+qb}')
    return load

def kv_groups(which, slot_s, adv=True):
    out = []
    for n in range(8):
        pre, t = dma_kv(which, slot_s, n)
        pre = [pre]
        out.append(dict(pre=pre, t=[t], tag=which))
    a, b = (sKT, sKT2) if which == 'K' else (sVT, sVT2)
    out[-1]['t'] = out[-1]['t'] + [f's_add_u32 s{a}, s{a}, 32768', f's_add_u32 s{b}, s{b}, 32768']
    return out

def gen_k2(debug=None):
    P = Prog('k2'); S = P.straight()
    S('s_cmp_ge_u32 s2, 256')
    S('s_cbranch_scc1 L_k2_end')
    S(f's_load_dwordx8 s[{sPTR}:{sPTR+7}], s[0:1], 0')
    S(f's_load_dwordx2 s[{sPTR+8}:{sPTR+9}], s[0:1], {KA["wo"]}')
    S(f's_load_dwordx2 s[{sPTR+10}:{sPTR+11}], s[0:1], {KA["ws"]}')
    S(f's_and_b32 s{sG}, s2, 7')
    S(f's_lshr_b32 s{sRB}, s2, 3')
    LN_, I16, KG = 240, 241, 242
    S('v_lshrrev_b32 v243, 6, v0')
    S(f'v_and_b32 v{LN_}, 63, v0')
    S(f'v_readfirstlane_b32 s{sW}, v243')
    S(f'v_and_b32 v{I16}, 15, v0')
    S(f'v_bfe_u32 v{KG}, v0, 4, 2')
    S(f's_lshr_b32 s{sP}, s{sW}, 1')
    S(f's_and_b32 s{sS}, s{sW}, 1')
    S(f's_lshl_b32 s{sW4K}, s{sW}, 12')
    S('s_waitcnt lgkmcnt(0)')
    srd(S, SX, sPTR, SZ['x'])
    S(f's_lshl_b32 s{sT0}, s{sG}, 20')
    for d, ptr in ((SK, sPTR+2), (SV, sPTR+4)):
        S(f's_add_u32 s{d}, s{ptr}, s{sT0}'); S(f's_addc_u32 s{d+1}, s{ptr+1}, 0')
        S(f's_mov_b32 s{d+2}, {1<<20}'); S(f's_mov_b32 s{d+3}, 0x00020000')
    srd(S, SWQ, sPTR+6, SZ['wq']); srd(S, SWO, sPTR+8, SZ['wo'])
    srd(S, SMOD, sPTR+10, 6*448*4, add=WS_MOD or None)
    srd(S, SP1, sPTR+10, 256*57344, add=WS_P1)
    srd(S, SDBG, sPTR+10, 64 << 20, add=WS_DBG)

    XP = 16
    S(f's_lshl_b32 s{sT0}, s{sRB}, 6'); S(f's_lshl_b32 s{sT1}, s{sW}, 4'); S(f's_add_u32 s{sT0}, s{sT0}, s{sT1}')
    S(f's_mul_i32 s{sT0}, s{sT0}, 896')
    S(f'v_mul_u32_u24 v243, 896, v{I16}')
    S(f'v_lshl_add_u32 v243, v{KG}, 4, v243')
    for s in range(14):
        S(f'buffer_load_dwordx4 {vr(XP+4*s)}, v243, s[{SX}:{SX+3}], s{sT0} offen offset:{64*s}')
    sHB = sT3
    S(f's_mul_i32 s{sHB}, s{sS}, 14336')
    S(f's_cmp_lt_u32 s{sW}, 2')
    S(f's_cselect_b32 s{sT1}, {4*SLOT}, 0')
    S(f's_add_u32 s{sHB}, s{sHB}, s{sT1}')
    S(f'v_lshlrev_b32 v244, 4, v{LN_}')
    S(f's_add_u32 m0, s{sHB}, 10240')
    for k in range(4):
        S(f'buffer_load_dwordx4 v244, s[{SMOD}:{SMOD+3}], 0 offen offset:{1024*k} lds', tag='mod')
    DQ = 245
    S(f'v_lshrrev_b32 v246, 3, v{LN_}')
    S(f'v_and_b32 v247, 7, v{LN_}')
    S(f'v_and_b32 v248, 6, v246')
    S(f'v_xor_b32 v248, v248, v247')
    S(f'v_lshrrev_b32 v249, 2, v246')
    S(f'v_lshlrev_b32 v249, 3, v249')
    S(f'v_and_b32 v250, 3, v246')
    S(f'v_add_u32 v249, v249, v250')
    S(f'v_lshlrev_b32 v249, 13, v249')
    S(f'v_lshl_add_u32 v{DQ}, v248, 4, v249')
    S(f's_lshl_b32 s{sT1}, s{sW}, 8')
    S(f'v_add_u32 v{DQ}, s{sT1}, v{DQ}')
    S(f'v_lshlrev_b32 v249, 9, v246')
    S(f'v_add_u32 v249, s{sW4K}, v249')
    S(f'v_lshl_add_u32 v{DV}, v248, 4, v249')
    S(f'v_lshrrev_b32 v250, 1, v246')
    S(f's_lshl_b32 s{sT1}, s{sS}, 2')
    S(f'v_or_b32 v250, s{sT1}, v250')
    S(f'v_xor_b32 v250, v250, v247')
    S(f'v_lshl_add_u32 v{DK}, v250, 4, v249')
    sQG = sT2
    S(f's_lshl_b32 s{sQG}, s{sG}, 10')
    def wq_dma(k):
        out = []
        slot = ((k + 1) % 5) * SLOT
        for rg in range(4):
            for cg in range(2):
                pre = [f's_add_u32 m0, s{sW4K}, {slot + (rg>>1)*16384 + ((rg&1)*2+cg)*1024 - cg*128}']
                if cg == 0:
                    pre.append(f's_add_u32 s{sT0}, s{sQG}, {k*262144 + (16*(rg&1) + 4*(rg>>1))*8192}')
                out.append(dict(pre=pre, t=[f'buffer_load_dwordx4 v{DQ}, s[{SWQ}:{SWQ+3}], s{sT0} offen offset:{cg*128} lds'], tag=f'wq{k}'))
        return out
    for k in range(3):
        for gr in wq_dma(k):
            for t in gr['pre']: S(t)
            for t in gr['t']: S(t, tag=gr['tag'])
    S(f'v_lshlrev_b32 v251, 6, v0')
    S(f's_lshl_b32 s{sT0}, s{sRB}, 15')
    for k in range(2):
        S(f'buffer_load_dword v252, v251, s[{SK}:{SK+3}], s{sT0} offen')
        S(f'buffer_load_dword v252, v251, s[{SV}:{SV+3}], s{sT0} offen')
        if k == 0: S(f's_add_u32 s{sT0}, s{sT0}, 16384')
    S(f'v_lshrrev_b32 v253, 4, v0'); S(f'v_lshlrev_b32 v253, 13, v253')
    S(f'v_lshl_add_u32 v253, v{I16}, 6, v253')
    S(f's_mul_i32 s{sT0}, s{sRB}, {14*8192}'); S(f's_add_u32 s{sT0}, s{sT0}, s{sQG}')
    S(f'buffer_load_dword v252, v253, s[{SWQ}:{SWQ+3}], s{sT0} offen')
    S(f's_lshl_b32 s{sT0}, s{sG}, 5'); S(f's_add_u32 s{sT0}, s{sT0}, s{sRB}'); S(f's_mul_i32 s{sT0}, s{sT0}, 14336')
    S(f'buffer_load_dword v252, v251, s[{SWO}:{SWO+3}], s{sT0} offen')

    XF = 72
    for d in range(56):
        S(f'v_lshlrev_b32 v{XF+2*d}, 16, v{XP+d}')
        S(f'v_and_b32 v{XF+2*d+1}, 0xffff0000, v{XP+d}')
    A0 = 8
    for k in range(4): S(f'v_pk_add_f32 {vr(A0+2*k,2)}, {vr(XF+4*k,2)}, {vr(XF+4*k+2,2)}')
    for d in range(8, 56): S(f'v_pk_add_f32 {vr(A0+2*(d%4),2)}, {vr(A0+2*(d%4),2)}, {vr(XF+2*d,2)}')
    S(f'v_pk_add_f32 {vr(A0,2)}, {vr(A0,2)}, {vr(A0+2,2)}')
    S(f'v_pk_add_f32 {vr(A0+4,2)}, {vr(A0+4,2)}, {vr(A0+6,2)}')
    S(f'v_pk_add_f32 {vr(A0,2)}, {vr(A0,2)}, {vr(A0+4,2)}')
    S(f'v_add_f32 v{A0}, v{A0}, v{A0+1}')
    allreduce_kg(S, A0, A0+1, 'v_add_f32')
    S(f'v_mul_f32 v{A0}, {f32(-1.0/448)}, v{A0}')
    S(f'v_mov_b32 v{A0+1}, v{A0}')
    for d in range(56): S(f'v_pk_add_f32 {vr(XF+2*d,2)}, {vr(XF+2*d,2)}, {vr(A0,2)}')
    B0 = 16
    for k in range(4): S(f'v_pk_mul_f32 {vr(B0+2*k,2)}, {vr(XF+2*k,2)}, {vr(XF+2*k,2)}')
    for d in range(4, 56): S(f'v_pk_fma_f32 {vr(B0+2*(d%4),2)}, {vr(XF+2*d,2)}, {vr(XF+2*d,2)}, {vr(B0+2*(d%4),2)}')
    S(f'v_pk_add_f32 {vr(B0,2)}, {vr(B0,2)}, {vr(B0+2,2)}')
    S(f'v_pk_add_f32 {vr(B0+4,2)}, {vr(B0+4,2)}, {vr(B0+6,2)}')
    S(f'v_pk_add_f32 {vr(B0,2)}, {vr(B0,2)}, {vr(B0+4,2)}')
    S(f'v_add_f32 v{A0}, v{B0}, v{B0+1}')
    allreduce_kg(S, A0, A0+1, 'v_add_f32')
    S(f'v_mov_b32 v{A0+2}, {f32(1e-5)}')
    S(f'v_fmac_f32 v{A0+2}, {f32(1.0/448)}, v{A0}')
    S(f'v_rsq_f32 v{A0}, v{A0+2}')
    S(f'v_mov_b32 v{A0+1}, v{A0}')
    S(f'v_lshlrev_b32 v243, 5, v{KG}')
    S(f'v_add_u32 v243, s{sHB}, v243')
    S(f'v_add_u32 v244, s{sHB}, v244')
    S.waittag('mod')
    MB = 184
    def mod_regs(s):
        if s < 10: return MB + 16*(s % 3)
        return {10: MB, 11: MB+16, 12: MB+32, 13: B0+8}[s]
    def mod_read(s):
        b = mod_regs(s)
        S(f'ds_read_b128 {vr(b)}, v243 offset:{10240 + s*128}')
        S(f'ds_read_b128 {vr(b+4)}, v243 offset:{10240 + s*128 + 16}')
        S(f'ds_read_b128 {vr(b+8)}, v243 offset:{10240 + 1792 + s*128}')
        S(f'ds_read_b128 {vr(b+12)}, v243 offset:{10240 + 1792 + s*128 + 16}')
    def mod_apply(s):
        b = mod_regs(s); x = XF + 8*s
        for k in range(4): S(f'v_pk_mul_f32 {vr(x+2*k,2)}, {vr(x+2*k,2)}, {vr(A0,2)}')
        for k in range(4): S(f'v_pk_fma_f32 {vr(x+2*k,2)}, {vr(x+2*k,2)}, {vr(b+8+2*k,2)}, {vr(b+2*k,2)}')
        h = B0 + 4*(s % 2)
        for k in range(4): S(f'v_cvt_pk_bf16_f32 v{h+k}, v{x+2*k}, v{x+2*k+1}')
        S(f'ds_write_b128 v244, {vr(h)} offset:{s*1024}')
    mod_read(0); mod_read(1)
    for s in range(10):
        if s + 2 < 10: mod_read(s + 2)
        mod_apply(s)
    for s in range(10, 14): mod_read(s)
    for s in range(10, 14): mod_apply(s)
    LQ = [232, 233, 234, 235]
    S(f'v_and_b32 v243, 1, v{KG}')
    S(f'v_lshlrev_b32 v243, 2, v243')
    S(f'v_lshrrev_b32 v246, 2, v{I16}')
    S(f'v_add_u32 v243, v243, v246')
    S(f'v_lshrrev_b32 v246, 1, v243')
    S(f'v_and_b32 v247, 3, v{I16}')
    S(f'v_lshlrev_b32 v247, 3, v247')
    S(f'v_lshl_add_u32 v247, v243, 7, v247')
    S(f'v_lshrrev_b32 v248, 1, v{KG}')
    for jj in range(4):
        S(f'v_xor_b32 v249, {jj}, v246')
        S(f'v_lshl_add_u32 v249, v249, 5, v247')
        S(f'v_lshl_add_u32 v{LQ[jj]}, v248, 11, v249')
        S(f'v_add_u32 v{LQ[jj]}, s{sW4K}, v{LQ[jj]}')
        S(f'v_lshl_add_u32 v{VA_[jj]}, v248, 12, v249')
    S(f's_lshl_b32 s{sT0}, s{sS}, 14')
    S(f's_add_u32 s{sT1}, s{sT0}, {2*SLOT}')
    for jj in range(4): S(f'v_add_u32 v{VA_[jj]}, s{sT1}, v{VA_[jj]}')
    S(f'v_lshrrev_b32 v243, 3, v{I16}')
    S(f'v_and_b32 v246, 7, v{I16}')
    S(f'v_lshrrev_b32 v247, 1, v246')
    S(f'v_lshl_or_b32 v247, v243, 2, v247')
    S(f'v_xor_b32 v247, v247, v{KG}')
    S(f'v_lshlrev_b32 v247, 4, v247')
    S(f'v_lshl_add_u32 v247, v246, 7, v247')
    S(f'v_lshl_add_u32 v247, v243, 12, v247')
    S(f'v_add_u32 v{KA_[0]+236}, s{sT0}, v247')
    S(f'v_xor_b32 v{KA_[1]+236}, 64, v{KA_[0]+236}')
    S(f'v_lshlrev_b32 v238, 4, v{LN_}')
    S('s_waitcnt lgkmcnt(0)')
    S('s_barrier')
    def Hr(qb, s): return ar(128 + (s*4+qb)*4) if s < 8 else vr(16 + ((s-8)*4+qb)*4)
    S(f'v_add_u32 v239, {4*SLOT}, v238')
    for s in range(14):
        for qb in range(4):
            a = 239 if qb < 2 else 238
            S(f'ds_read_b128 {Hr(qb,s)}, v{a} offset:{(qb&1)*14336 + s*1024}')
    S('s_waitcnt lgkmcnt(0)')
    S('s_barrier')
    for k in (3, 4):
        for gr in wq_dma(k):
            for t in gr['pre']: S(t)
            for t in gr['t']: S(t, tag=gr['tag'])
    S(f's_mov_b32 s{sKT}, 0'); S(f's_mov_b32 s{sKT2}, 16384'); S(f's_mov_b32 s{sVT}, 0'); S(f's_mov_b32 s{sVT2}, 16384')
    for k in range(5): S(f's_add_u32 s{sSL[k]}, s{sW4K}, {k*SLOT}')
    S(f's_mov_b32 s{sTHR}, {f32(2.0**24)}')

    QF = 112
    def qfr(n): return QF + 4*(n % 8)
    cur = [None]
    def q_reads(n):
        k, j = n // 8, n % 8
        cg, jj = j >> 2, j & 3
        slot = ((k + 1) % 5) * SLOT
        base = slot // 65536 * 65536
        out = []
        if j == 0:
            out.append(dict(waittag=f'wq{k}'))
            d = base - (cur[0] or 0)
            if d:
                for a in LQ: out.append(dict(t=f'v_add_u32 v{a}, {d & 0xffffffff}, v{a}'))
            cur[0] = base
        o = slot - base + cg*1024
        out.append(dict(t=f'ds_read_b64_tr_b16 {vr(qfr(n),2)}, v{LQ[jj]} offset:{o}'))
        out.append(dict(t=f'ds_read_b64_tr_b16 {vr(qfr(n)+2,2)}, v{LQ[jj]} offset:{o+16384}'))
        return out
    QAH = 5
    for n in range(QAH):
        for f in q_reads(n):
            if 'waittag' in f: S.waittag(f['waittag'])
            else: S(f['t'])
    m = []; F = []
    for n in range(112):
        k, j = n // 8, n % 8
        for qb in range(4):
            c = ar(Or(j, qb)) if k else '0'
            m.append(f'{MF} {ar(Or(j,qb))}, {vr(qfr(n))}, {Hr(qb,k)}, {c}')
        if n + QAH < 112:
            for f in q_reads(n + QAH):
                f.update(lo=n*4, c=1, chain='rd'); F.append(f)
    for k in range(12):
        if k + 5 < 14: groups = wq_dma(k + 5)
        else: groups = kv_groups('K' if k < 11 else 'V', sSL[k - 9])
        for i, gr in enumerate(groups):
            g = (k + 1)*32 + 4*i + 2
            F.append(dict(t=gr['pre'], lo=g-1, c=1, chain='dma'))
            F.append(dict(t=gr['t'], lo=g, c=2, tag=gr['tag'], chain='dma'))
    F.sort(key=lambda f: f['lo'])
    interleave(S, m, F, cap=3)
    S('s_barrier')
    S(f'v_lshlrev_b32 v243, 4, v{I16}')
    S(f'v_lshrrev_b32 v246, 1, v{KG}')
    S(f'v_lshl_add_u32 v243, v246, 8, v243')
    S(f'v_and_b32 v246, 1, v{KG}')
    S(f'v_lshl_add_u32 v243, v246, 3, v243')
    S(f's_lshl_b32 s{sT0}, s{sP}, 15'); S(f's_add_u32 s{sT0}, s{sT0}, {3*SLOT}')
    S(f's_lshl_b32 s{sT1}, s{sS}, 12'); S(f's_add_u32 s{sT1}, s{sT1}, s{sT0}')
    S(f'v_add_u32 v243, s{sT1}, v243')
    S(f'v_add_u32 v239, s{sT0}, v238')
    S(f's_mov_b32 s{sT2}, {f32(QSCALE)}')
    n = 0
    for j in range(8):
        for qb in range(4):
            t = 16 + 8*(n % 8); n += 1
            for r in range(4): S(f'v_accvgpr_read_b32 v{t+r}, a{Or(j,qb)+r}')
            for r in range(4): S(f'v_mul_f32 v{t+r}, s{sT2}, v{t+r}')
            S(f'v_cvt_pk_bf16_f32 v{t+4}, v{t}, v{t+1}')
            S(f'v_cvt_pk_bf16_f32 v{t+5}, v{t+2}, v{t+3}')
            S(f'ds_write_b64 v243, {vr(t+4,2)} offset:{(qb*8 + (j>>1))*1024 + (j&1)*512}')
    S(f'v_mov_b32 v{KA_[0]}, v236'); S(f'v_mov_b32 v{KA_[1]}, v237')
    S(f'v_mov_b32 v{TMP}, v239')
    S(f'v_mov_b32 v{TMP+1}, v{LN_}')
    S('s_waitcnt lgkmcnt(0)')
    S.waittag('V')
    S('s_barrier')
    for qb in range(4):
        for st in range(8):
            S(f'ds_read_b128 {vr(Qr(qb,st))}, v{TMP} offset:{(qb*8+st)*1024}')
    for i in range(256): S(f'v_accvgpr_write_b32 a{i}, 0')
    if debug == 'q':
        S(f'v_lshlrev_b32 v{TMP+1}, 4, v{TMP+1}')
        S(f's_lshl_b32 s{sT0}, s2, 2'); S(f's_add_u32 s{sT0}, s{sT0}, s{sW}'); S(f's_lshl_b32 s{sT0}, s{sT0}, 15')
        for f in range(32):
            S(f'buffer_store_dwordx4 {vr(Q_+4*f)}, v{TMP+1}, s[{SDBG}:{SDBG+3}], s{sT0} offen')
            S(f's_add_u32 s{sT0}, s{sT0}, 1024')
        S('s_waitcnt vmcnt(0)')
    S('s_waitcnt lgkmcnt(0)')
    S('s_barrier')
    for gr in kv_groups('K', sSL[3]):
        for t in gr['pre']: S(t)
        for t in gr['t']: S(t, tag=gr['tag'])
    for f in range(AHEAD):
        for t in k_read(f): S(t)
    F = []
    for f in range(16 - AHEAD):
        F.append(dict(t=k_read(f + AHEAD), lo=f*4, c=1))
    interleave(S, mfma_A(first_c='0'), F)
    for a in KA_: S(f'v_add_u32 v{a}, {SLOT}, v{a}')
    S('s_barrier')
    for f in range(AHEAD):
        for t in k_read(f): S(t)
    renorm(S, 0, True)
    for qb in range(4): S(f'v_mov_b32 v{L_+qb}, v{PS+qb}')
    S(f's_mov_b32 s{sCNT}, 0')

    def perm(r): KR, VR, KN, D1, D2 = r; return (KN, D1, D2, KR, VR)
    roles0 = (sSL[1], sSL[2], sSL[3], sSL[4], sSL[0])
    roles1 = perm(roles0); roles2 = perm(roles1)
    Lp = P.loop()
    Lp('.p2align 6'); Lp('L_k2_loop:')
    ld = iteration(Lp, 0, roles0, kv_groups('V', roles0[3]), kv_groups('K', roles0[4]), label='a')
    iteration(Lp, 1, roles1, kv_groups('V', roles1[3]), kv_groups('K', roles1[4]), label='b')
    mp = {roles0[k]: roles2[k] for k in range(5)}
    start = roles0[0]
    Lp(f's_mov_b32 s{sT0}, s{start}')
    d = start
    while mp[d] != start:
        Lp(f's_mov_b32 s{d}, s{mp[d]}'); d = mp[d]
    Lp(f's_mov_b32 s{d}, s{sT0}')
    Lp(f's_add_u32 s{sCNT}, s{sCNT}, 1')
    Lp(f's_cmp_lt_u32 s{sCNT}, 14')
    Lp('s_cbranch_scc1 L_k2_loop')
    S = P.straight()
    iteration(S, 0, roles0, kv_groups('V', roles0[3]), kv_groups('K', roles0[4]), label='c')
    iteration(S, 1, roles1, kv_groups('V', roles1[3]), [], label='d')
    iteration(S, 0, roles2, kv_groups('V', roles2[3]), [], nextK=False, label='e')
    S.waittag('V')
    S('s_barrier')
    for f in range(16, 16 + AHEAD):
        for t in v_read(f): S(t)
    iteration(S, 1, perm(roles2), [], [], doA=False, nextK=False)
    S_after = S
    return P, S, dict(LQ=LQ)
```

```python
from k2 import *

XS = [0, 1, 2, 4]

def proj_out(S, nsteps, bfrag_addr, srd_w, s_wbase, row_bytes, ring_s, ring_v, WV, ACC, srd_out, s_out, VO, VO2,
             pre_issued, tagp, BF=16, AF=48):
    NR = len(ring_s)
    def w_dma(k):
        out = []
        for n in range(7):
            pre = [f's_add_u32 m0, s{ring_s[k % NR]}, {n*1024}']
            if n == 0: pre.append(f's_add_u32 s{sT0}, s{s_wbase}, {k*32*row_bytes}')
            out.append(dict(pre=pre, t=[f'buffer_load_dwordx4 v{WV+n}, s[{srd_w}:{srd_w+3}], s{sT0} offen lds'], tag=f'{tagp}{k}'))
        return out
    def afr(n): return AF + 4*(n % 8)
    def bfr(k, qb): return BF + ((k & 1)*4 + qb)*4
    def a_reads(n):
        k, i = n // 7, n % 7
        out = []
        if i == 0: out.append(dict(waittag=f'{tagp}{k}'))
        out.append(dict(t=f'ds_read_b64_tr_b16 {vr(afr(n),2)}, v{ring_v[k % NR]} offset:{i*32}'))
        out.append(dict(t=f'ds_read_b64_tr_b16 {vr(afr(n)+2,2)}, v{ring_v[k % NR]} offset:{3584 + i*32}'))
        return out
    def b_read(k, qb):
        a, o = bfrag_addr(k, qb)
        return f'ds_read_b128 {vr(bfr(k,qb))}, v{a} offset:{o}'
    AH = 5
    for qb in range(4): S(b_read(0, qb))
    for n in range(AH):
        for f in a_reads(n):
            if 'waittag' in f: S.waittag(f['waittag'])
            else: S(f['t'])
    m = []; F = []
    N = nsteps * 7
    for n in range(N):
        k, i = n // 7, n % 7
        for qb in range(4):
            acc = vr(ACC + (i*4+qb)*4)
            m.append(f'{MF} {acc}, {vr(afr(n))}, {vr(bfr(k,qb))}, {acc if k else "0"}')
        if n + AH < N:
            for f in a_reads(n + AH):
                f.update(lo=n*4, c=1, chain='rd'); F.append(f)
        if k + 1 < nsteps and i < 4:
            F.append(dict(t=b_read(k+1, i), lo=n*4 + 2, c=1, chain='rd'))
    for k in range(nsteps):
        if k + NR < nsteps and k + NR >= pre_issued:
            for i, gr in enumerate(w_dma(k + NR)):
                g = (k + 1)*28 + 4*i + 2
                F.append(dict(t=gr['pre'], lo=g-1, c=1, chain='dma'))
                F.append(dict(t=gr['t'], lo=g, c=2, tag=gr['tag'], chain='dma'))
    F.sort(key=lambda f: f['lo'])
    interleave(S, m, F, cap=3)
    n = 0
    for qb in range(4):
        S(f's_add_u32 s{sT0}, s{s_out}, {2*qb*57344}')
        for ip in range(3):
            t = BF + 4*(n % 8); n += 1
            for hlf in range(2):
                a = ACC + ((2*ip+hlf)*4+qb)*4
                S(f'v_cvt_pk_bf16_f32 v{t+2*hlf}, v{a}, v{a+1}')
                S(f'v_cvt_pk_bf16_f32 v{t+2*hlf+1}, v{a+2}, v{a+3}')
            S(f'buffer_store_dwordx4 {vr(t)}, v{VO}, s[{srd_out}:{srd_out+3}], s{sT0} offen offset:{ip*512}')
        t = BF + 4*(n % 8); n += 1
        a = ACC + (6*4+qb)*4
        S(f'v_cvt_pk_bf16_f32 v{t}, v{a}, v{a+1}')
        S(f'v_cvt_pk_bf16_f32 v{t+1}, v{a+2}, v{a+3}')
        S(f'buffer_store_dwordx2 {vr(t,2)}, v{VO2}, s[{srd_out}:{srd_out+3}], s{sT0} offen')
    return w_dma

def proj_lane_setup(S, LN_, I16, KG, WV, LT, VO, VO2, row_bytes, t0, t1):
    S(f's_mul_i32 s{sT1}, s{sW}, 224')
    for n in range(7):
        S(f'v_add_u32 v{t0}, {64*n}, v{LN_}')
        S(f'v_mul_u32_u24 v{t1}, 4682, v{t0}')
        S(f'v_lshrrev_b32 v{t1}, 16, v{t1}')
        S(f'v_mul_u32_u24 v{WV+n}, {row_bytes - 224}, v{t1}')
        S(f'v_lshl_add_u32 v{WV+n}, v{t0}, 4, v{WV+n}')
        S(f'v_add_u32 v{WV+n}, s{sT1}, v{WV+n}')
    S(f'v_lshrrev_b32 v{t0}, 2, v{I16}')
    S(f'v_lshl_add_u32 v{t0}, v{KG}, 2, v{t0}')
    S(f'v_mul_u32_u24 v{t0}, 224, v{t0}')
    S(f'v_and_b32 v{t1}, 3, v{I16}')
    S(f'v_lshl_add_u32 v{LT}, v{t1}, 3, v{t0}')
    S(f'v_lshrrev_b32 v{t0}, 3, v{I16}')
    S(f'v_mul_u32_u24 v{t0}, 57344, v{t0}')
    S(f'v_and_b32 v{t1}, 7, v{I16}')
    S(f'v_lshl_add_u32 v{t1}, v{KG}, 3, v{t1}')
    S(f'v_lshl_add_u32 v{VO}, v{t1}, 4, v{t0}')
    S(f'v_lshl_add_u32 v{VO2}, v{t1}, 3, v{t0}')
    S(f'v_add_u32 v{VO2}, 1536, v{VO2}')

def gen_k2_full(debug=None):
    P, S, info = gen_k2(debug)
    LN_, I16, KG = 96, 97, 98
    WV = 100; LT = 107; VO = 108; VO2 = 109; L16 = [110, 111, 112]; RV = [113, 114, 115]
    t0, t1 = 116, 117
    MLW, MLR, XW, XR = 118, 119, 120, 121
    S(f'v_mbcnt_lo_u32_b32 v{LN_}, -1, 0')
    S(f'v_mbcnt_hi_u32_b32 v{LN_}, -1, v{LN_}')
    S(f'v_and_b32 v{I16}, 15, v{LN_}')
    S(f'v_lshrrev_b32 v{KG}, 4, v{LN_}')
    proj_lane_setup(S, LN_, I16, KG, WV, LT, VO, VO2, 896, t0, t1)
    sR = [40, 41, 42]; sXW, sXR, sWB, sOUT = 43, 44, 45, 46
    S(f's_cmp_eq_u32 s{sW}, 3'); S(f's_cselect_b32 s{sXW}, 4, s{sW}'); S(f's_lshl_b32 s{sXW}, s{sXW}, 15')
    S(f's_xor_b32 s{sT0}, s{sW}, 1')
    S(f's_cmp_eq_u32 s{sT0}, 3'); S(f's_cselect_b32 s{sXR}, 4, s{sT0}'); S(f's_lshl_b32 s{sXR}, s{sXR}, 15')
    S(f's_mul_i32 s{sR[0]}, s{sW}, 7168'); S(f's_add_u32 s{sR[0]}, s{sR[0]}, {3*SLOT}')
    S(f's_add_u32 s{sR[1]}, s{sXR}, 16384'); S(f's_add_u32 s{sR[2]}, s{sXR}, {16384+7168}')
    S(f's_mul_i32 s{sWB}, s{sG}, {512*896}')
    S(f's_mul_i32 s{sOUT}, s{sRB}, {8*57344}')
    S(f's_mul_i32 s{sT1}, s{sG}, 7168'); S(f's_add_u32 s{sOUT}, s{sOUT}, s{sT1}')
    S(f's_mul_i32 s{sT1}, s{sW}, 1792'); S(f's_add_u32 s{sOUT}, s{sOUT}, s{sT1}')
    for k in range(3): S(f'v_add_u32 v{RV[k]}, s{sR[k]}, v{LT}')
    S(f'v_lshlrev_b32 v{L16[0]}, 4, v{LN_}')
    S(f'v_add_u32 v{L16[1]}, 65536, v{L16[0]}')
    S(f'v_add_u32 v{L16[2]}, 131072, v{L16[0]}')
    S(f'v_add_u32 v{XW}, s{sXW}, v{L16[0]}')
    S(f'v_add_u32 v{XR}, s{sXR}, v{L16[0]}')
    def wdma(k):
        for n in range(7):
            S(f's_add_u32 m0, s{sR[k]}, {n*1024}')
            if n == 0: S(f's_add_u32 s{sT1}, s{sWB}, {k*32*896}')
            S(f'buffer_load_dwordx4 v{WV+n}, s[{SWO}:{SWO+3}], s{sT1} offen lds', tag=f'wo{k}')
    wdma(0)
    S(f'v_lshlrev_b32 v{t0}, 3, v{I16}')
    S(f's_lshl_b32 s{sT1}, s{sW}, 9'); S(f's_add_u32 s{sT1}, s{sT1}, {3*SLOT + 28672}')
    S(f'v_add_u32 v{MLW}, s{sT1}, v{t0}')
    S(f'v_xor_b32 v{MLR}, 512, v{MLW}')
    for qb in range(4):
        allreduce_kg(S, L_+qb, t0, 'v_add_f32')
        S(f'v_mov_b32 v{NM+4*qb+1}, v{L_+qb}')
        S(f'ds_write_b64 v{MLW}, {vr(NM+4*qb,2)} offset:{qb*128}')
    S('s_waitcnt lgkmcnt(0)')
    S('s_barrier')
    for qb in range(4): S(f'ds_read_b64 {vr(NM+4*qb+2,2)}, v{MLR} offset:{qb*128}')
    for j in range(8, 16):
        for qb in range(4):
            S(f'ds_write_b128 v{XW}, {ar(Or(j,qb))} offset:{((j-8)*4+qb)*1024}')
    SC = 16
    for qb in range(4):
        n0, l0, n1, l1 = NM+4*qb, NM+4*qb+1, NM+4*qb+2, NM+4*qb+3
        S(f'v_min_f32 v{t0}, v{n0}, v{n1}')
        S(f'v_sub_f32 v{n0}, v{t0}, v{n0}')
        S(f'v_sub_f32 v{n1}, v{t0}, v{n1}')
        S(f'v_exp_f32 v{n0}, v{n0}')
        S(f'v_exp_f32 v{n1}, v{n1}')
        S(f'v_mul_f32 v{l0}, v{l0}, v{n0}')
        S(f'v_fmac_f32 v{l0}, v{l1}, v{n1}')
        S(f'v_rcp_f32 v{l0}, v{l0}')
        S(f'v_mul_f32 v{SC+4*qb}, v{n0}, v{l0}')
        S(f'v_mul_f32 v{SC+4*qb+1}, v{n0}, v{l0}')
        S(f'v_mul_f32 v{SC+4*qb+2}, v{n1}, v{l0}')
        S(f'v_mul_f32 v{SC+4*qb+3}, v{n1}, v{l0}')
    S('s_waitcnt lgkmcnt(0)')
    S('s_barrier')
    RB = 128
    for jj in range(8):
        for qb in range(4):
            S(f'ds_read_b128 {vr(RB+(jj*4+qb)*4)}, v{XR} offset:{(jj*4+qb)*1024}')
    n = 0
    for u in range(4):
        for qb in range(4):
            t = 32 + 12*(n % 4); n += 1
            for hlf in range(2):
                jj = 2*u + hlf
                o = t + 4*hlf
                for r in range(4): S(f'v_accvgpr_read_b32 v{o+r}, a{Or(jj,qb)+r}')
                rb = RB + (jj*4+qb)*4
                for k in range(2):
                    S(f'v_pk_mul_f32 {vr(o+2*k,2)}, {vr(o+2*k,2)}, {vr(SC+4*qb,2)}')
                for k in range(2):
                    S(f'v_pk_fma_f32 {vr(o+2*k,2)}, {vr(rb+2*k,2)}, {vr(SC+4*qb+2,2)}, {vr(o+2*k,2)}')
            for k in range(4): S(f'v_cvt_pk_bf16_f32 v{t+8+k}, v{t+2*k}, v{t+2*k+1}')
            S(f'ds_write_b128 v{XR}, {vr(t+8)} offset:{(u*4+qb)*1024}')
            if debug == 'o':
                if n == 1:
                    S(f's_lshl_b32 s{sT2}, s2, 2'); S(f's_add_u32 s{sT2}, s{sT2}, s{sW}'); S(f's_lshl_b32 s{sT2}, s{sT2}, 14')
                S(f'buffer_store_dwordx4 {vr(t+8)}, v{L16[0]}, s[{SDBG}:{SDBG+3}], s{sT2} offen')
                S(f's_add_u32 s{sT2}, s{sT2}, 1024')
                S('s_waitcnt vmcnt(0)')
    S('s_waitcnt lgkmcnt(0)')
    wdma(1); wdma(2)
    S('s_barrier')
    def baddr(k, qb):
        a = XS[(k >> 2) ^ 1]*SLOT + ((k & 3)*4 + qb)*1024
        return L16[a // 65536], a % 65536
    proj_out(S, 16, baddr, SWO, sWB, 896, sR, RV, WV, 128, SP1, sOUT, VO, VO2, 3, 'wo')
    S('L_k2_end:')
    S('s_endpgm')
    X = P.outofline()
    labels = {'a': 1, 'b': 0, 'c': 1, 'd': 0, 'e': 1}
    for i, (lab, buf) in enumerate(labels.items()):
        X(f'L_rare_{lab}:')
        X(f's_mov_b32 s{sRET}, {i}')
        X(f's_branch L_renorm_{buf}')
    for buf in range(2):
        X(f'L_renorm_{buf}:')
        X('s_nop 15')
        renorm(X, buf, False)
        X('s_nop 3')
        mine = [(i, lab) for i, (lab, b) in enumerate(labels.items()) if b == buf]
        for i, lab in mine[:-1]:
            X(f's_cmp_eq_u32 s{sRET}, {i}')
            X(f's_cbranch_scc1 L_back_{lab}')
        X(f's_branch L_back_{mine[-1][1]}')
    return P.finalize(), dict(name='k2_kernel', grid=256, block=256, lds=163840, vgpr=512, sgpr=80, accum=256)
```

```python
from k2e import *

def red_setup(S, name, ws_part, ptrs):
    S('s_cmp_ge_u32 s2, 256')
    S(f's_cbranch_scc1 L_{name}_end')
    for d, key in ptrs: S(f's_load_dwordx2 s[{d}:{d+1}], s[0:1], {KA[key]}')
    S('v_lshrrev_b32 v9, 6, v0')
    S('v_and_b32 v1, 63, v0')
    S('v_readfirstlane_b32 s3, v9')
    S('v_and_b32 v2, 31, v0')
    S('v_bfe_u32 v3, v0, 5, 1')
    S('v_bfe_u32 v4, v0, 3, 2')
    S('v_and_b32 v5, 7, v0')
    S('v_mul_u32_u24 v9, 28672, v3')
    S('v_lshl_add_u32 v6, v2, 4, v9')
    S('v_lshl_add_u32 v7, v2, 3, v9')
    S('v_add_u32 v7, 1536, v7')
    S('s_mul_i32 s4, s2, 57344')
    S('s_mul_i32 s5, s3, 1792')
    S('s_add_u32 s4, s4, s5')
    S('s_waitcnt lgkmcnt(0)')

PR = 16
AC = 72
def red_load(S, srdp):
    for gi in range(4):
        S(f's_add_u32 s5, s4, {gi*7168}')
        b = PR + 14*gi
        for ip in range(3):
            S(f'buffer_load_dwordx4 {vr(b+4*ip)}, v6, s[{srdp}:{srdp+3}], s5 offen offset:{ip*512}')
        S(f'buffer_load_dwordx2 {vr(b+12,2)}, v7, s[{srdp}:{srdp+3}], s5 offen')
def red_sum(S):
    for d in range(14):
        S(f'v_lshlrev_b32 v{AC+2*d}, 16, v{PR+d}')
        S(f'v_and_b32 v{AC+2*d+1}, 0xffff0000, v{PR+d}')
    for gi in range(1, 4):
        for d in range(14):
            S(f'v_lshlrev_b32 v10, 16, v{PR+14*gi+d}')
            S(f'v_and_b32 v11, 0xffff0000, v{PR+14*gi+d}')
            S(f'v_pk_add_f32 {vr(AC+2*d,2)}, {vr(AC+2*d,2)}, v[10:11]')
    for k in range(28):
        t = PR + k
        S(f'v_mov_b32 v{t}, v{AC+k}')
    for k in range(28):
        S(f'v_permlane32_swap_b32 v{AC+k}, v{PR+k}')
    for k in range(14):
        S(f'v_pk_add_f32 {vr(AC+2*k,2)}, {vr(AC+2*k,2)}, {vr(PR+2*k,2)}')

def row_reduce(S, x, t):
    S(f'v_add_f32_dpp v{x}, v{x}, v{x} row_ror:8 row_mask:0xf bank_mask:0xf')
    S(f'v_mov_b32 v{t}, v{x}')
    S(f'v_permlane16_swap_b32 v{x}, v{t}')
    S(f'v_add_f32 v{x}, v{x}, v{t}')

def layernorm28(S, X, ldsoff):
    a = 10
    S(f'v_pk_add_f32 v[10:11], {vr(X,2)}, {vr(X+2,2)}')
    for k in range(2, 14): S(f'v_pk_add_f32 v[10:11], v[10:11], {vr(X+2*k,2)}')
    S('v_add_f32 v10, v10, v11')
    row_reduce(S, 10, 11)
    S(f'v_mul_f32 v12, {f32(1.0/112)}, v10')
    S('v_sub_f32 v10, 0, v12'); S('v_sub_f32 v11, 0, v12')
    for k in range(14): S(f'v_pk_add_f32 {vr(X+2*k,2)}, {vr(X+2*k,2)}, v[10:11]')
    S(f'v_pk_mul_f32 v[10:11], {vr(X,2)}, {vr(X,2)}')
    for k in range(1, 14): S(f'v_pk_fma_f32 v[10:11], {vr(X+2*k,2)}, {vr(X+2*k,2)}, v[10:11]')
    S('v_add_f32 v13, v10, v11')
    row_reduce(S, 13, 11)
    S(f'ds_write_b64 v14, v[12:13] offset:{ldsoff}')
    S('s_waitcnt lgkmcnt(0)')
    S('s_barrier')
    S(f'ds_read_b128 {vr(PR)}, v15 offset:{ldsoff}')
    S(f'ds_read_b128 {vr(PR+4)}, v15 offset:{ldsoff+16}')
    m = [PR, PR+2, PR+4, PR+6]; q = [PR+1, PR+3, PR+5, PR+7]
    S(f'v_add_f32 v10, v{m[0]}, v{m[1]}'); S(f'v_add_f32 v11, v{m[2]}, v{m[3]}')
    S('v_add_f32 v10, v10, v11'); S('v_mul_f32 v10, 0.25, v10' if False else f'v_mul_f32 v10, {f32(0.25)}, v10')
    S(f'v_add_f32 v11, v{q[0]}, v{q[1]}'); S(f'v_add_f32 v11, v11, v{q[2]}'); S(f'v_add_f32 v11, v11, v{q[3]}')
    S(f'v_mov_b32 v13, {f32(1e-5)}')
    S(f'v_fmac_f32 v13, {f32(1.0/448)}, v11')
    for k in range(4):
        S(f'v_sub_f32 v{m[k]}, v{m[k]}, v10')
        S(f'v_mul_f32 v{m[k]}, v{m[k]}, v{m[k]}')
        S(f'v_fmac_f32 v13, {f32(0.25)}, v{m[k]}')
    S('v_rsq_f32 v13, v13')
    S('v_sub_f32 v10, v12, v10')
    S('v_mul_f32 v10, v10, v13'); S('v_mov_b32 v11, v10')
    S('v_mov_b32 v12, v13')
    for k in range(14): S(f'v_pk_fma_f32 {vr(X+2*k,2)}, {vr(X+2*k,2)}, v[12:13], v[10:11]')

def gen_k3():
    P = Prog('k3'); S = P.straight()
    red_setup(S, 'k3', WS_P1, [(36, 'x'), (38, 'ws')])
    srd(S, 8, 38, 256*57344, add=WS_P1); srd(S, 12, 36, SZ['x']); srd(S, 16, 38, 6*448*4, add=WS_MOD or None)
    srd(S, 20, 38, 2048*448*4, add=WS_X2); srd(S, 24, 38, 2048*448*2, add=WS_Y)
    red_load(S, 8)
    XR = 100; GA = 116; CB = 144; SB = 172
    S('s_mul_i32 s5, s2, 7168'); S('s_mul_i32 s6, s3, 224'); S('s_add_u32 s5, s5, s6')
    S('v_mul_u32_u24 v8, 896, v5'); S('v_lshl_add_u32 v8, v4, 3, v8')
    for i in range(7): S(f'buffer_load_dwordx2 {vr(XR+2*i,2)}, v8, s[12:15], s5 offen offset:{32*i}')
    S('v_lshlrev_b32 v9, 4, v4')
    S('s_mul_i32 s6, s3, 448')
    for arr, idx in ((GA, 2), (CB, 4), (SB, 3)):
        S(f's_add_u32 s7, s6, {idx*1792}')
        for i in range(7): S(f'buffer_load_dwordx4 {vr(arr+4*i)}, v9, s[16:19], s7 offen offset:{64*i}')
    S('v_lshlrev_b32 v15, 5, v5')
    S('s_lshl_b32 s5, s3, 3')
    S('v_add_u32 v14, s5, v15')
    red_sum(S)
    for d in range(14):
        S(f'v_lshlrev_b32 v10, 16, v{XR+d}')
        S(f'v_and_b32 v11, 0xffff0000, v{XR+d}')
        S(f'v_pk_fma_f32 {vr(AC+2*d,2)}, {vr(AC+2*d,2)}, {vr(GA+2*d,2)}, v[10:11]')
    S('s_mul_i32 s5, s2, 14336'); S('s_mul_i32 s6, s3, 3584'); S('s_add_u32 s5, s5, s6')
    S('v_lshlrev_b32 v8, 4, v2')
    S('s_mov_b32 exec_hi, 0')
    for i in range(7): S(f'buffer_store_dwordx4 {vr(AC+4*i)}, v8, s[20:23], s5 offen offset:{512*i}')
    S('s_mov_b64 exec, -1')
    Y = 200
    for k in range(28): S(f'v_mov_b32 v{Y+k}, v{AC+k}')
    layernorm28(S, Y, 0)
    for k in range(14): S(f'v_pk_fma_f32 {vr(Y+2*k,2)}, {vr(Y+2*k,2)}, {vr(CB+2*k,2)}, {vr(SB+2*k,2)}')
    layernorm28(S, Y, 256)
    for k in range(14): S(f'v_cvt_pk_bf16_f32 v{XR+k}, v{Y+2*k}, v{Y+2*k+1}')
    S('s_lshr_b32 s5, s2, 3'); S('s_mul_i32 s5, s5, 57344')
    S('s_bfe_u32 s6, s2, 0x20001'); S('s_lshl_b32 s6, s6, 10'); S('s_add_u32 s5, s5, s6')
    S('s_and_b32 s6, s2, 1'); S('s_lshl_b32 s6, s6, 7'); S('s_add_u32 s5, s5, s6')
    S('v_lshlrev_b32 v8, 4, v5'); S('v_lshl_add_u32 v8, v4, 8, v8')
    S('s_mul_i32 s6, s3, 12288'); S('s_add_u32 s6, s6, s5')
    S('s_lshr_b32 s7, s3, 1'); S('s_lshl_b32 s7, s7, 12'); S('s_add_u32 s7, s7, s5'); S(f's_add_u32 s7, s7, {12*4096}')
    S('s_and_b32 s28, s3, 1'); S('s_lshl_b32 s28, s28, 3'); S('s_add_u32 s7, s7, s28')
    S('s_mov_b32 exec_hi, 0')
    for ip in range(3):
        S(f'buffer_store_dwordx4 {vr(XR+4*ip)}, v8, s[24:27], s6 offen')
        if ip < 2: S('s_add_u32 s6, s6, 4096')
    S(f'buffer_store_dwordx2 {vr(XR+12,2)}, v8, s[24:27], s7 offen')
    S('L_k3_end:')
    S('s_endpgm')
    return P.finalize(), dict(name='k3_kernel', grid=256, block=256, lds=1024, vgpr=232, sgpr=48, accum=232)

def gen_k5():
    P = Prog('k5'); S = P.straight()
    red_setup(S, 'k5', WS_P2, [(36, 'b2'), (38, 'ws'), (40, 'out')])
    srd(S, 8, 38, 256*57344, add=WS_P2); srd(S, 12, 36, SZ['b2']); srd(S, 16, 38, 6*448*4, add=WS_MOD or None)
    srd(S, 20, 38, 2048*448*4, add=WS_X2); srd(S, 24, 40, SZ['out'])
    red_load(S, 8)
    BR = 100; GB = 116; X2 = 144
    S('s_mul_i32 s6, s3, 224')
    S('v_lshlrev_b32 v8, 3, v4')
    for i in range(7): S(f'buffer_load_dwordx2 {vr(BR+2*i,2)}, v8, s[12:15], s6 offen offset:{32*i}')
    S('v_lshlrev_b32 v9, 4, v4')
    S('s_mul_i32 s7, s3, 448'); S(f's_add_u32 s7, s7, {5*1792}')
    for i in range(7): S(f'buffer_load_dwordx4 {vr(GB+4*i)}, v9, s[16:19], s7 offen offset:{64*i}')
    S('s_mul_i32 s5, s2, 14336'); S('s_mul_i32 s7, s3, 3584'); S('s_add_u32 s5, s5, s7')
    S('v_lshlrev_b32 v12, 4, v2')
    for i in range(7): S(f'buffer_load_dwordx4 {vr(X2+4*i)}, v12, s[20:23], s5 offen offset:{512*i}')
    red_sum(S)
    for d in range(14):
        S(f'v_lshlrev_b32 v10, 16, v{BR+d}')
        S(f'v_and_b32 v11, 0xffff0000, v{BR+d}')
        S(f'v_pk_add_f32 {vr(AC+2*d,2)}, {vr(AC+2*d,2)}, v[10:11]')
        S(f'v_pk_fma_f32 {vr(AC+2*d,2)}, {vr(AC+2*d,2)}, {vr(GB+2*d,2)}, {vr(X2+2*d,2)}')
        S(f'v_cvt_pk_bf16_f32 v{PR+d}, v{AC+2*d}, v{AC+2*d+1}')
    S('s_mul_i32 s5, s2, 7168'); S('s_add_u32 s5, s5, s6')
    S('v_mul_u32_u24 v8, 896, v5'); S('v_lshl_add_u32 v8, v4, 3, v8')
    S('s_mov_b32 exec_hi, 0')
    for i in range(7): S(f'buffer_store_dwordx2 {vr(PR+2*i,2)}, v8, s[24:27], s5 offen offset:{32*i}')
    S('L_k5_end:')
    S('s_endpgm')
    return P.finalize(), dict(name='k5_kernel', grid=256, block=256, lds=0, vgpr=176, sgpr=48, accum=176)

def gen_k4():
    P = Prog('k4'); S = P.straight()
    SY, SW1, SW2, SB1, SP2 = 8, 12, 16, 20, 24
    S('s_cmp_ge_u32 s2, 256')
    S('s_cbranch_scc1 L_k4_end')
    S(f's_load_dwordx4 s[56:59], s[0:1], {KA["w1"]}')
    S(f's_load_dwordx2 s[60:61], s[0:1], {KA["w2"]}')
    S(f's_load_dwordx2 s[62:63], s[0:1], {KA["ws"]}')
    S(f's_and_b32 s{sG}, s2, 7'); S(f's_lshr_b32 s{sRB}, s2, 3')
    LN_, I16, KG = 96, 97, 98
    WV = 100; LT = 107; VO = 108; VO2 = 109; L16 = 110; RV = [113, 114, 115]
    t0, t1, t2, t3 = 116, 117, 118, 119
    D1 = 120; LA = [121, 122, 123, 124]
    S(f'v_lshrrev_b32 v{t0}, 6, v0')
    S(f'v_and_b32 v{LN_}, 63, v0')
    S(f'v_readfirstlane_b32 s{sW}, v{t0}')
    S(f'v_and_b32 v{I16}, 15, v0')
    S(f'v_bfe_u32 v{KG}, v0, 4, 2')
    S(f'v_lshlrev_b32 v{L16}, 4, v{LN_}')
    S('s_waitcnt lgkmcnt(0)')
    srd(S, SY, 62, 2048*448*2, add=WS_Y); srd(S, SW1, 56, SZ['w1']); srd(S, SW2, 60, SZ['w2'])
    srd(S, SB1, 58, SZ['b1']); srd(S, SP2, 62, 256*57344, add=WS_P2)
    S(f's_mul_i32 s{sT0}, s{sW}, 14336')
    S(f's_mul_i32 s{sT1}, s{sRB}, 57344'); S(f's_add_u32 s{sT1}, s{sT1}, s{sT0}')
    for k in range(14):
        if k % 4 == 0:
            S(f's_add_u32 m0, s{sT0}, {k*1024}')
            S(f's_add_u32 s{sT2}, s{sT1}, {k*1024}')
        S(f'buffer_load_dwordx4 v{L16}, s[{SY}:{SY+3}], s{sT2} offen offset:{(k%4)*1024} lds', tag='y')
    S(f'v_lshrrev_b32 v{t0}, 3, v{LN_}'); S(f'v_and_b32 v{t1}, 7, v{LN_}')
    S(f'v_and_b32 v{t2}, 6, v{t0}'); S(f'v_xor_b32 v{t2}, v{t2}, v{t1}')
    S(f'v_mul_u32_u24 v{D1}, 3584, v{t0}')
    S(f'v_lshl_add_u32 v{D1}, v{t2}, 4, v{D1}')
    S(f's_lshl_b32 s{sT0}, s{sW}, 7')
    S(f'v_add_u32 v{D1}, s{sT0}, v{D1}')
    sPB, sG1 = 40, 41
    S(f's_mul_i32 s{sPB}, s{sW}, 26624'); S(f's_add_u32 s{sPB}, s{sPB}, 57344')
    S(f's_mul_i32 s{sG1}, s{sG}, 448')
    def rowbase(k, rg):
        if k < 12: return 112*(k // 3) + 32*(k % 3) + 8*rg
        u = k - 12
        return 224*u + 96 + 8*rg if rg < 2 else 224*u + 208 + 8*(rg - 2)
    def w1_dma(k):
        out = []
        for rg in range(4):
            pre = [f's_add_u32 m0, s{sPB}, {((k+4) % 6)*4096 + rg*1024}', f's_add_u32 s{sT0}, s{sG1}, {rowbase(k, rg)*3584}']
            out.append(dict(pre=pre, t=[f'buffer_load_dwordx4 v{D1}, s[{SW1}:{SW1+3}], s{sT0} offen lds'], tag=f'w1{k}'))
        return out
    for k in range(6):
        for gr in w1_dma(k):
            for t in gr['pre']: S(t)
            for t in gr['t']: S(t, tag=gr['tag'])
    BI = 80
    S(f's_lshl_b32 s{sT0}, s{sW}, 7'); S(f's_add_u32 s{sT0}, s{sT0}, s{sG1}')
    S(f'v_lshlrev_b32 v{t0}, 3, v{KG}')
    for jj in range(4): S(f'buffer_load_dwordx2 {vr(2+2*jj,2)}, v{t0}, s[{SB1}:{SB1+3}], s{sT0} offen offset:{32*jj}')
    proj_lane_setup(S, LN_, I16, KG, WV, LT, VO, VO2, 896, t0, t1)
    sR = [42, 43, 44]; sWB, sOUT = 45, 46
    for k in range(3): S(f's_add_u32 s{sR[k]}, s{sPB}, {k*7168}')
    for k in range(3): S(f'v_add_u32 v{RV[k]}, s{sR[k]}, v{LT}')
    S(f's_mul_i32 s{sWB}, s{sG}, {224*896}')
    S(f's_mul_i32 s{sOUT}, s{sRB}, {8*57344}')
    S(f's_mul_i32 s{sT1}, s{sG}, 7168'); S(f's_add_u32 s{sOUT}, s{sOUT}, s{sT1}')
    S(f's_mul_i32 s{sT1}, s{sW}, 1792'); S(f's_add_u32 s{sOUT}, s{sOUT}, s{sT1}')
    S(f'v_and_b32 v{t0}, 1, v{KG}'); S(f'v_lshlrev_b32 v{t0}, 2, v{t0}')
    S(f'v_lshrrev_b32 v{t1}, 2, v{I16}'); S(f'v_add_u32 v{t0}, v{t0}, v{t1}')
    S(f'v_lshrrev_b32 v{t1}, 1, v{t0}')
    S(f'v_and_b32 v{t2}, 3, v{I16}'); S(f'v_lshlrev_b32 v{t2}, 3, v{t2}')
    S(f'v_lshl_add_u32 v{t2}, v{t0}, 7, v{t2}')
    S(f'v_lshrrev_b32 v{t3}, 1, v{KG}'); S(f'v_lshl_add_u32 v{t2}, v{t3}, 10, v{t2}')
    S(f'v_add_u32 v{t2}, s{sPB}, v{t2}')
    for jj in range(4):
        S(f'v_xor_b32 v{t3}, {jj}, v{t1}')
        S(f'v_lshl_add_u32 v{LA[jj]}, v{t3}, 5, v{t2}')
    for jj in range(4):
        S(f'v_lshlrev_b32 v{BI+4*jj}, 16, v{2+2*jj}'); S(f'v_and_b32 v{BI+4*jj+1}, 0xffff0000, v{2+2*jj}')
        S(f'v_lshlrev_b32 v{BI+4*jj+2}, 16, v{3+2*jj}'); S(f'v_and_b32 v{BI+4*jj+3}, 0xffff0000, v{3+2*jj}')
    S.waittag('y')
    S('s_barrier')
    ACC = 128; BF = 16; AF = 48
    def afr(n): return AF + 4*(n % 8)
    def bfr(k, qb): return BF + ((k & 1)*4 + qb)*4
    def a_reads(n):
        k, jj = n // 4, n % 4
        out = []
        if jj == 0: out.append(dict(waittag=f'w1{k}'))
        o = ((k+4) % 6)*4096
        out.append(dict(t=f'ds_read_b64_tr_b16 {vr(afr(n),2)}, v{LA[jj]} offset:{o}'))
        out.append(dict(t=f'ds_read_b64_tr_b16 {vr(afr(n)+2,2)}, v{LA[jj]} offset:{o+2048}'))
        return out
    def b_read(k, qb): return f'ds_read_b128 {vr(bfr(k,qb))}, v{L16} offset:{(k*4+qb)*1024}'
    AH = 5
    for qb in range(4): S(b_read(0, qb))
    for n in range(AH):
        for f in a_reads(n):
            if 'waittag' in f: S.waittag(f['waittag'])
            else: S(f['t'])
    def w2_dma(k):
        out = []
        for n in range(7):
            pre = [f's_add_u32 m0, s{sR[k]}, {n*1024}']
            if n == 0: pre.append(f's_add_u32 s{sT0}, s{sWB}, {k*32*896}')
            out.append(dict(pre=pre, t=[f'buffer_load_dwordx4 v{WV+n}, s[{SW2}:{SW2+3}], s{sT0} offen lds'], tag=f'w2{k}'))
        return out
    m = []; F = []
    for n in range(56):
        k, jj = n // 4, n % 4
        for qb in range(4):
            acc = vr(ACC + (jj*4+qb)*4)
            m.append(f'{MF} {acc}, {vr(afr(n))}, {vr(bfr(k,qb))}, {acc if k else vr(BI+4*jj)}')
        if n + AH < 56:
            for f in a_reads(n + AH):
                f.update(lo=n*4, c=1, chain='rd'); F.append(f)
        if k + 1 < 14:
            F.append(dict(t=b_read(k+1, jj), lo=n*4 + 2, c=1, chain='rd'))
    for k in range(8):
        for i, gr in enumerate(w1_dma(k + 6)):
            g = (k + 1)*16 + 4*i + 2
            F.append(dict(t=gr['pre'], lo=g-1, c=1, chain='dma'))
            F.append(dict(t=gr['t'], lo=g, c=2, tag=gr['tag'], chain='dma'))
    for kk, after in ((0, 9), (1, 11)):
        for i, gr in enumerate(w2_dma(kk)):
            g = (after + 1)*16 + 4*i + 2
            F.append(dict(t=gr['pre'], lo=g-1, c=1, chain='dma'))
            F.append(dict(t=gr['t'], lo=g, c=2, tag=gr['tag'], chain='dma'))
    F.append(dict(t='s_barrier', lo=9*16, c=1))
    F.sort(key=lambda f: f['lo'])
    interleave(S, m, F, cap=3)
    for gr in w2_dma(2):
        for t in gr['pre']: S(t)
        for t in gr['t']: S(t, tag=gr['tag'])
    K0 = -2.0 * 0.7978845608028654 * 1.4426950408889634
    K1 = K0 * 0.044715
    S(f's_mov_b32 s{sT2}, {f32(K1)}'); S(f'v_mov_b32 v{t3}, {f32(K0)}')
    S(f's_lshl_b32 s{sT1}, s{sW}, 13')
    S(f'v_add_u32 v{t2}, s{sT1}, v{L16}')
    n = 0
    for u in range(2):
        for qb in range(4):
            T = 16 + 16*(n % 4); n += 1
            src = [ACC + ((2*u + e // 4)*4 + qb)*4 + e % 4 for e in range(8)]
            for e in range(8): S(f'v_mul_f32 v{T+e}, v{src[e]}, v{src[e]}')
            for e in range(8): S(f'v_fma_f32 v{T+e}, v{T+e}, s{sT2}, v{t3}')
            for e in range(8): S(f'v_mul_f32 v{T+e}, v{T+e}, v{src[e]}')
            for e in range(8): S(f'v_exp_f32 v{T+e}, v{T+e}')
            for e in range(8): S(f'v_add_f32 v{T+e}, 1.0, v{T+e}')
            for e in range(8): S(f'v_rcp_f32 v{T+e}, v{T+e}')
            for e in range(8): S(f'v_mul_f32 v{T+e}, v{T+e}, v{src[e]}')
            for e in range(4): S(f'v_cvt_pk_bf16_f32 v{T+8+e}, v{T+2*e}, v{T+2*e+1}')
            S(f'ds_write_b128 v{t2}, {vr(T+8)} offset:{(u*4+qb)*1024}')
    S('s_waitcnt lgkmcnt(0)')
    S('s_barrier')
    proj_out(S, 7, lambda k, qb: (L16, (k*4+qb)*1024), SW2, sWB, 896, sR, RV, WV, 128, SP2, sOUT, VO, VO2, 3, 'w2')
    S('L_k4_end:')
    S('s_endpgm')
    return P.finalize(), dict(name='k4_kernel', grid=256, block=256, lds=163840, vgpr=256, sgpr=80, accum=256)

def gen_all():
    return [gen_k3(), gen_k4(), gen_k5()]
```

```python
import sys
from common import *
import k1, k2e
NAME = "adaLN_cond__gqa_block_cached__mixer_channel_mlp__prompt"
def header():
    ref = open(f'cdna_kernels/{NAME}.s.ref').read().split('\n')
    return [l for l in ref if l.startswith(';') and '@launch' not in l and 'Override launch' not in l and 'grid=ceil' not in l]
def build(kernels, path):
    out = header()
    for txt, d in kernels:
        out.append(f'; @launch kernel={d["name"]} grid=({d["grid"]},1,1) block=({d["block"]},1,1) lds={d["lds"]}')
    out.append('.amdgcn_target "amdgcn-amd-amdhsa--gfx950"'); out.append('.text')
    s = '\n'.join(out) + '\n'
    for txt, d in kernels: s += kernel_header(d['name']) + txt
    s += 'L_code_end:\n.section .rodata,"a"\n'
    for txt, d in kernels: s += kernel_desc(d['name'], d['vgpr'], d['sgpr'], d['accum'])
    open(path, 'w').write(s)
if __name__ == '__main__':
    dbg = sys.argv[2] if len(sys.argv) > 2 else None
    if dbg == 'stamp':
        STAMPS['on'] = True; dbg = None
    ks = [k1.gen_k1(), k2e.gen_k2_full(dbg)]
    try:
        import k345
        if not OPT.get('fuse', 1): ks += k345.gen_all()
    except ImportError:
        pass
    build(ks, sys.argv[1])
```

```python
import build, k1, k2e, k345
ks = [k1.gen_k1(), k2e.gen_k2_full(None)] + k345.gen_all()
empty = ('    s_endpgm\n', dict(name='k0_kernel', grid=256, block=64, lds=0, vgpr=8, sgpr=16, accum=8))
build.build([empty] + ks, 'v_front.s')
build.build(ks + [empty], 'v_back.s')
build.build(ks, 'v_base.s')
```

```python
import re

REG_RE = re.compile(r'\b([vas])\[(\d+):(\d+)\]|\b([vas])(\d+)\b|\b(vcc|m0|exec|scc)\b')

def regs_of(op):
    out = []
    for m in REG_RE.finditer(op):
        if m.group(1):
            out += [(m.group(1), i) for i in range(int(m.group(2)), int(m.group(3)) + 1)]
        elif m.group(4):
            out.append((m.group(4), int(m.group(5))))
        else:
            out.append((m.group(6), 0))
    return out

TRANS = ('v_exp_f32', 'v_log_f32', 'v_rcp_f32', 'v_rsq_f32', 'v_sqrt_f32', 'v_sin_f32', 'v_cos_f32')

class I:
    __slots__ = ('text', 'op', 'kind', 'rd', 'wr', 'tag', 'srcc', 'passes', 'wide', 'ab', 'note', 'dpp')
    def __init__(self, text, tag=None, note=None):
        self.text = text; self.tag = tag; self.note = note
        self.rd = set(); self.wr = set(); self.srcc = set(); self.ab = set(); self.passes = 0; self.wide = False
        self.dpp = False
        t = text.split(';')[0].strip()
        if t.endswith(':'):
            self.op = 'label'; self.kind = 'label'; return
        if t.startswith('.') or t == '':
            self.op = 'dir'; self.kind = 'label'; return
        parts = t.split(None, 1)
        op = parts[0]; self.op = op
        rest = parts[1] if len(parts) > 1 else ''
        ops = [o.strip() for o in rest.split(',')] if rest else []
        R = lambda k: set(regs_of(ops[k]))
        allr = lambda a: set().union(*[set(regs_of(o)) for o in ops[a:]]) if len(ops) > a else set()
        if op.startswith('v_mfma'):
            self.kind = 'mfma'; self.wr = R(0); self.ab = R(1) | R(2); self.srcc = R(3); self.rd = self.ab | self.srcc
            self.passes = 4 if '16x16x32' in op else 8
        elif op.startswith('v_cmp'):
            self.kind = 'valu'; self.wr = R(0); self.rd = allr(1)
        elif op.startswith('v_permlane'):
            self.kind = 'valu'; self.wr = allr(0); self.rd = allr(0)
        elif op.startswith('v_'):
            self.kind = 'trans' if re.sub(r'_e(32|64)$', '', op) in TRANS else 'valu'
            self.wr = R(0); self.rd = allr(1)
            if op.startswith(('v_fmac', 'v_pk_fmac', 'v_dot2c')): self.rd |= self.wr
            if op.startswith('v_cndmask') and len(ops) == 3: self.rd.add(('vcc', 0))
            if 'row_' in t or 'quad_perm' in t or 'wave_' in t:
                self.dpp = True; self.rd |= self.wr
        elif op.startswith('ds_'):
            if op.startswith(('ds_read', 'ds_bpermute', 'ds_permute', 'ds_swizzle')):
                self.kind = 'dsr'; self.wr = R(0); self.rd = allr(1)
            else:
                self.kind = 'dsw'; self.rd = allr(0)
        elif op.startswith(('buffer_load', 'global_load')):
            if re.search(r'\blds\b', t) or '_lds_' in op:
                self.kind = 'dma'; self.rd = allr(0) | {('m0', 0)}
            else:
                self.kind = 'vml'; self.wr = R(0); self.rd = allr(1)
        elif op.startswith(('buffer_store', 'global_store', 'buffer_atomic', 'global_atomic')):
            self.kind = 'vms'; self.rd = allr(0)
            if 'atomic' in op and 'sc0' in t:
                self.kind = 'vml'; self.wr = R(0)
            self.wide = op.endswith(('x3', 'x4'))
            if self.wide: self.srcc = R(0) if op.startswith('buffer') else R(1)
        elif op.startswith(('buffer_wbl2', 'buffer_inv')):
            self.kind = 'vms'
        elif op.startswith(('s_load', 's_memtime', 's_memrealtime', 's_buffer_load')):
            self.kind = 'smem'; self.wr = R(0); self.rd = allr(1)
        elif op in ('s_waitcnt', 's_barrier', 's_nop', 's_endpgm', 's_setprio', 's_sleep') or op.startswith(('s_branch', 's_cbranch')):
            self.kind = 'ctl'
        elif op.startswith('s_cmp') or op.startswith('s_bitcmp'):
            self.kind = 'salu'; self.rd = allr(0); self.wr = {('scc', 0)}
        elif op.startswith('s_'):
            self.kind = 'salu'; self.wr = R(0); self.rd = allr(1)
            if 'saveexec' in op: self.wr.add(('exec', 0))
        elif op == 'WAITTAG':
            self.kind = 'waittag'
        else:
            raise ValueError('unknown op ' + text)
    def states(self):
        if self.kind in ('label', 'waittag'): return 0
        if self.op == 's_nop': return int(self.text.split()[1].rstrip(';'), 0) + 1
        return 1

class Seq:
    def __init__(self): self.l = []
    def __call__(self, text, tag=None, note=None):
        for line in text.strip().split('\n'):
            line = line.strip()
            if line: self.l.append(I(line, tag, note))
    def waittag(self, tag):
        i = I('WAITTAG'); i.tag = tag; self.l.append(i)
    def extend(self, other): self.l.extend(other.l if isinstance(other, Seq) else other)

class Prog:
    def __init__(self, name): self.name = name; self.segs = []
    def straight(self):
        s = Seq(); self.segs.append(('s', s)); return s
    def loop(self):
        s = Seq(); self.segs.append(('l', s)); return s
    def outofline(self):
        s = Seq(); self.segs.append(('x', s)); return s

    def _linear(self):
        lin = []
        for kind, s in self.segs:
            if kind == 's': lin += s.l
            elif kind == 'l': lin += s.l + s.l + s.l
        return lin

    def insert_waits(self):
        pre = {}
        def run(lin):
            changed = False
            vm = []; lg = []
            for ins in lin:
                key = id(ins)
                def apply(v, l):
                    if v is not None: del vm[:max(0, len(vm) - v)]
                    if l is not None: del lg[:max(0, len(lg) - l)]
                if key in pre: apply(*pre[key])
                if ins.op == 's_waitcnt':
                    m = re.search(r'vmcnt\((\d+)\)', ins.text); m2 = re.search(r'lgkmcnt\((\d+)\)', ins.text)
                    apply(int(m.group(1)) if m else None, int(m2.group(1)) if m2 else None)
                    continue
                needv = needl = None
                touched = ins.rd | ins.wr
                if ins.kind == 'waittag':
                    for k, (w, t) in enumerate(vm):
                        if t == ins.tag: needv = len(vm) - 1 - k
                else:
                    for k, (w, t) in enumerate(vm):
                        if w & touched: needv = len(vm) - 1 - k
                    for k, (w, t) in enumerate(lg):
                        if w & touched: needl = len(lg) - 1 - k if t != 'smem' else 0
                    if needl is not None and any(t == 'smem' for w, t in lg): needl = 0
                if needv is not None or needl is not None:
                    if needv is not None: needv = min(needv, 63)
                    if needl is not None: needl = min(needl, 15)
                    old = pre.get(key, [None, None])
                    mn = lambda a, b: b if a is None else (a if b is None else min(a, b))
                    pre[key] = [mn(old[0], needv), mn(old[1], needl)]
                    changed = True
                    apply(*pre[key])
                if ins.kind in ('vml', 'vms', 'dma'): vm.append((set(ins.wr), ins.tag))
                elif ins.kind in ('dsr', 'dsw'): lg.append((set(ins.wr), ins.tag))
                elif ins.kind == 'smem': lg.append((set(ins.wr), 'smem')); lg.append((set(ins.wr), 'smem'))
                assert len(vm) <= 63 or True
            return changed
        lin = self._linear()
        for _ in range(10):
            if not run(lin): break
        else: raise RuntimeError('wait insertion did not converge')
        for kind, s in self.segs:
            if kind == 'x':
                for _ in range(10):
                    if not run(s.l): break
        for kind, s in self.segs:
            new = []
            for ins in s.l:
                if id(ins) in pre:
                    v, l = pre[id(ins)]
                    t = 's_waitcnt' + (f' vmcnt({v})' if v is not None else '') + (f' lgkmcnt({l})' if l is not None else '')
                    new.append(I(t))
                if ins.kind != 'waittag': new.append(ins)
            s.l = new

    @staticmethod
    def need(p, c):
        n = 0
        pv = p.kind in ('valu', 'trans')
        cv = c.kind in ('valu', 'trans')
        vw = {r for r in p.wr if r[0] in 'va' and r[0] != 'vcc'}
        vw = {r for r in p.wr if r[0] in ('v', 'a')}
        sw = {r for r in p.wr if r[0] in ('s', 'vcc')}
        if pv and c.kind == 'mfma' and (vw & c.rd): n = max(n, 2)
        if p.kind == 'mfma':
            big = {4: 8, 8: 12}[p.passes]
            if c.kind == 'mfma':
                if p.wr & c.ab: n = max(n, big)
                if p.wr & c.srcc and not (p.wr == c.srcc and p.passes == c.passes): n = max(n, {4: 6, 8: 10}[p.passes])
                if p.wr & c.wr and not (p.wr == c.srcc): n = max(n, big)
            elif cv or c.kind in ('dsr', 'dsw', 'vml', 'vms', 'dma'):
                if p.wr & (c.rd | c.wr): n = max(n, big)
            if cv and (p.srcc & c.wr): n = max(n, {4: 3, 8: 7}[p.passes])
            if c.kind in ('dsr', 'vml') and (p.srcc & c.wr): n = max(n, {4: 3, 8: 7}[p.passes])
        if p.kind == 'trans' and cv and (vw & c.rd): n = max(n, 1)
        if pv and sw:
            if cv and (sw & c.rd): n = max(n, 4 if c.op.startswith(('v_readlane', 'v_writelane')) else 2)
            if c.kind in ('vml', 'vms', 'dma') and (sw & c.rd): n = max(n, 5)
        if pv and vw:
            if c.op.startswith(('v_readfirstlane', 'v_readlane')) and (vw & c.rd): n = max(n, 1)
            if c.op.startswith('v_permlane') and (vw & c.rd): n = max(n, 2)
            if c.dpp and (vw & c.rd): n = max(n, 2)
        if p.kind == 'salu' and ('m0', 0) in p.wr and c.kind == 'dma': n = max(n, 1)
        if p.op.startswith('v_dot') and c.op != p.op and (vw & (c.rd | c.wr)): n = max(n, 3)
        if p.kind == 'vms' and p.wide and (p.srcc & c.wr): n = max(n, 2)
        if p.kind == 'salu' and ('exec', 0) in p.wr and c.dpp: n = max(n, 5)
        return n

    def fix_hazards(self, verbose=True):
        log = []
        def scan(lin):
            for j, c in enumerate(lin):
                if c.kind in ('label', 'ctl'): continue
                dist = 0
                for k in range(j - 1, max(-1, j - 30), -1):
                    p = lin[k]
                    if dist >= 20: break
                    n = self.need(p, c)
                    if n > dist: return c, n - dist, p
                    dist += p.states()
            return None
        def fix(getlin):
            while True:
                r = scan(getlin())
                if r is None: break
                c, n, p = r
                for kind, s in self.segs:
                    for idx, ins in enumerate(s.l):
                        if ins is c:
                            s.l.insert(idx, I(f's_nop {n-1}'))
                            log.append((kind, n, p.text, c.text)); break
                    else: continue
                    break
        fix(self._linear)
        for kind, s in self.segs:
            if kind == 'x': fix(lambda s=s: s.l)
        if verbose:
            for k, n, p, c in log:
                if k == 'l': print(f'[{self.name}] loop nop {n}: {p}  ->  {c}')
        return log

    def text(self):
        out = []
        for kind, s in self.segs:
            for ins in s.l:
                t = ins.text
                out.append(t if ins.kind == 'label' else '    ' + t)
        return '\n'.join(out) + '\n'

    def finalize(self, verbose=True):
        self.insert_waits()
        self.fix_hazards(verbose)
        return self.text()

def kernel_header(name):
    return f'.globl {name}\n.p2align 8\n.type {name},@function\n{name}:\n'

def kernel_desc(name, vgpr, sgpr, accum):
    return (f'.p2align 6\n.amdhsa_kernel {name}\n  .amdhsa_next_free_vgpr {vgpr}\n  .amdhsa_next_free_sgpr {sgpr}\n'
            f'  .amdhsa_accum_offset {accum}\n  .amdhsa_group_segment_fixed_size 0\n  .amdhsa_kernarg_size 120\n'
            f'  .amdhsa_user_sgpr_count 2\n  .amdhsa_user_sgpr_kernarg_segment_ptr 1\n'
            f'  .amdhsa_system_sgpr_workgroup_id_x 1\n.end_amdhsa_kernel\n')

def interleave(seq, mfmas, fillers, cap=2):
    G = len(mfmas)
    gaps = [[] for _ in range(G)]
    load = [0.0] * G
    last = {}
    for f in fillers:
        ch = f.get('chain')
        g = max(f.get('lo', 0), last.get(ch, 0))
        hi = f.get('hi', G - 1)
        c = f.get('c', 1)
        while g < hi and load[g] + c > cap: g += 1
        g = min(g, G - 1)
        gaps[g].append(f); load[g] += c
        if ch is not None: last[ch] = g
    for g in range(G):
        seq(mfmas[g])
        for f in gaps[g]:
            if f.get('waittag') is not None: seq.waittag(f['waittag']); continue
            ts = f['t'] if isinstance(f['t'], list) else [f['t']]
            for t in ts: seq(t, tag=f.get('tag'))
    return load

class Op:
    def __init__(self, t, c=1, fixed=None, lo=0, deps=(), tag=None, waittag=None, pri=0, dist=0):
        self.t = t if isinstance(t, list) else [t]
        self.c = c; self.fixed = fixed; self.lo = lo; self.deps = list(deps); self.tag = tag
        self.waittag = waittag; self.pri = pri; self.gap = None; self.dist = dist

def schedule(seq, mfmas, ops, cap=2.0, last=None, verbose=None):
    G = len(mfmas)
    last = G - 1 if last is None else last
    fixed = [o for o in ops if o.fixed is not None]
    flex = [o for o in ops if o.fixed is None]
    def attempt(extra):
        for o in ops: o.gap = None
        gaps = [[] for _ in range(G)]
        load = [0.0] * G
        for o in fixed:
            o.gap = o.fixed; gaps[o.fixed].append(o); load[o.fixed] += o.c
        pend = list(flex)
        bank = 0.0
        for g in range(last + 1):
            bank = min(bank + extra, 1.0)
            while True:
                room = cap - load[g] + (1.0 if bank >= 1.0 else 0.0)
                cand = None
                for o in pend:
                    if o.lo > g or o.c > room: continue
                    if any(d.gap is None or d.gap + o.dist > g for d in o.deps): continue
                    if cand is None or o.pri > cand.pri: cand = o
                if cand is None: break
                if load[g] + cand.c > cap: bank -= 1.0
                cand.gap = g; gaps[g].append(cand); load[g] += cand.c; pend.remove(cand)
        return (gaps, load) if not pend else None
    res = None
    for e in range(0, 41):
        res = attempt(e * 0.05)
        if res: break
    assert res, 'cannot schedule'
    gaps, load = res
    if verbose: print(f'[{verbose}] extra={e*0.05:.2f} total load={sum(load):.0f} over={sum(max(0,l-cap) for l in load):.0f} gaps={G}')
    for g in range(G):
        seq(mfmas[g])
        for o in gaps[g]:
            if o.waittag is not None: seq.waittag(o.waittag); continue
            for t in o.t: seq(t, tag=o.tag)
    return load
```

```python
from asmlib import *

KA = dict(x=0, k=8, v=16, wq=24, wo=32, bx=40, w1=48, b1=56, w2=64, b2=72, c=80, wmod=88, out=96, dbg=104, ws=112)
SZ = dict(x=2048*448*2, k=8*2048*256*2, v=8*2048*256*2, wq=448*4096*2, wo=4096*448*2, w1=448*1792*2, b1=1792*2,
          w2=1792*448*2, b2=448*2, c=448*2, wmod=448*2688*2, out=2048*448*2, dbg=256)

WS_MOD = 0
WS_MODQ = 12288
WS_FL = 32768
WS_Y = 1 << 16
WS_X2 = WS_Y + (2 << 20)
WS_P1 = WS_X2 + (4 << 20)
WS_P2 = WS_P1 + (16 << 20)
WS_DBG = WS_P2 + (16 << 20)
WS_SIZE = 268435456

def srd(S, d, ptr_lo, nbytes, add=None):
    if add:
        S(f's_add_u32 s{d}, s{ptr_lo}, {add}')
        S(f's_addc_u32 s{d+1}, s{ptr_lo+1}, 0')
    else:
        S(f's_mov_b32 s{d}, s{ptr_lo}')
        S(f's_mov_b32 s{d+1}, s{ptr_lo+1}')
    S(f's_mov_b32 s{d+2}, {nbytes}')
    S(f's_mov_b32 s{d+3}, 0x00020000')

STAMPS = {'on': False}
ST0 = 80
def stamp(S, idx):
    if STAMPS['on']:
        S(f's_memrealtime s[{ST0+2*idx}:{ST0+2*idx+1}]')
def stamp_flush(S, n, kidx, wave_sgpr, ws_lo, vt=0):
    if not STAMPS['on']: return
    S('s_waitcnt lgkmcnt(0) vmcnt(0)')
    S('s_mov_b64 exec, -1')
    srd(S, 76, ws_lo, 1 << 20, add=WS_DBG + (32 << 20))
    S(f's_add_u32 s75, s2, {kidx*256}'); S('s_lshl_b32 s75, s75, 2'); S(f's_add_u32 s75, s75, s{wave_sgpr}'); S('s_lshl_b32 s75, s75, 6')
    S(f'v_mov_b32 v{vt+1}, 0')
    for i in range(n):
        S(f'v_mov_b32 v{vt}, s{ST0+2*i}')
        S(f'buffer_store_dword v{vt}, v{vt+1}, s[76:79], s75 offen offset:{4*i}')
        S('s_nop 1')

OPT = {}
```

```python
from common import *

def gen_k1():
    P = Prog('k1'); S = P.straight()
    S('s_cmp_ge_u32 s2, 256')
    S('s_cbranch_scc1 L_k1_end')
    S(f's_load_dwordx4 s[4:7], s[0:1], {KA["c"]}')
    S(f's_load_dwordx2 s[8:9], s[0:1], {KA["ws"]}')
    S(f's_load_dwordx8 s[32:39], s[0:1], 0')
    S('v_and_b32 v1, 3, v0')
    S('v_lshrrev_b32 v2, 2, v0')
    S('s_waitcnt lgkmcnt(0)')
    srd(S, 12, 4, SZ['c']); srd(S, 16, 6, SZ['wmod']); srd(S, 20, 8, 16384, add=WS_MOD or None)
    S('s_cmp_ge_u32 s2, 84')
    S('s_cbranch_scc1 L_k1_warm')
    S('v_lshlrev_b32 v3, 1, v2')
    S('v_mul_u32_u24 v4, 5376, v2')
    S('v_lshl_add_u32 v4, v1, 4, v4')
    S('s_lshl_b32 s3, s2, 6')
    for k in range(7):
        S(f'buffer_load_ushort v{8+k}, v3, s[12:15], 0 offen offset:{128*k}')
    for k in range(7):
        S(f's_add_u32 s24, s3, {k*64*5376}')
        S(f'buffer_load_dwordx4 v[{16+4*k}:{19+4*k}], v4, s[16:19], s24 offen')
    S('L_k1_warm:')
    srd(S, 40, 32, SZ['x']); srd(S, 44, 34, SZ['k']); srd(S, 48, 36, SZ['v']); srd(S, 52, 38, SZ['wq'])
    S('s_and_b32 s56, s2, 7'); S('s_lshr_b32 s57, s2, 3')
    S('v_lshlrev_b32 v56, 6, v0')
    S('v_lshrrev_b32 v57, 4, v0'); S('v_lshlrev_b32 v57, 13, v57')
    S('v_and_b32 v58, 15, v0'); S('v_lshl_add_u32 v57, v58, 6, v57')
    S(f's_mul_i32 s58, s57, {14*8192}'); S('s_lshl_b32 s59, s56, 10'); S('s_add_u32 s58, s58, s59')
    S('v_cmp_gt_u32 vcc, 224, v0'); S('v_mov_b32 v58, 0x7fffffff'); S('v_cndmask_b32 v57, v58, v57, vcc')
    S('buffer_load_dword v59, v57, s[52:55], s58 offen')
    S('s_mul_i32 s58, s57, 57344')
    for k in range(4):
        if k == 3:
            S('v_cmp_gt_u32 vcc, 128, v0'); S('v_cndmask_b32 v56, v58, v56, vcc')
        if OPT.get('xwarm'): S(f'buffer_load_dword v{60+k}, v56, s[40:43], s58 offen')
        S('s_add_u32 s58, s58, 16384')
    S('s_lshl_b32 s58, s56, 20'); S('s_lshl_b32 s59, s57, 13'); S('s_add_u32 s58, s58, s59')
    S('buffer_load_dword v64, v56, s[44:47], s58 offen')
    S('buffer_load_dword v65, v56, s[48:51], s58 offen')
    S('s_getpc_b64 s[60:61]')
    S('L_k1_pc:')
    S('s_sub_u32 s60, s60, L_k1_pc-k1_kernel'); S('s_subb_u32 s61, s61, 0')
    S('s_mov_b32 s62, L_code_end-k1_kernel'); S('s_mov_b32 s63, 0x00020000')
    S('v_cmp_gt_u32 vcc, 64, v0'); S('v_cndmask_b32 v56, v58, v56, vcc')
    S('s_lshl_b32 s59, s57, 12')
    S('buffer_load_dword v66, v56, s[60:63], s59 offen')
    S('s_cmp_ge_u32 s2, 84')
    S('s_cbranch_scc1 L_k1_end')
    for j in range(8): S(f'v_mov_b32 v{48+j}, 0')
    for k in range(7):
        c = 8 + k
        S(f'v_lshlrev_b32 v{c}, 16, v{c}')
        S(f'v_mul_f32 v5, 0xbfb8aa3b, v{c}')
        S('v_exp_f32 v5, v5')
        S('v_add_f32 v5, 1.0, v5')
        S('v_rcp_f32 v5, v5')
        S(f'v_mul_f32 v5, v5, v{c}')
        S('v_cvt_pk_bf16_f32 v5, v5, v5')
        S(f'v_lshlrev_b32 v{c}, 16, v5')
    for k in range(7):
        for j in range(4):
            w = 16 + 4*k + j
            S(f'v_lshlrev_b32 v6, 16, v{w}')
            S(f'v_and_b32 v7, 0xffff0000, v{w}')
            S(f'v_fmac_f32 v{48+2*j}, v6, v{8+k}')
            S(f'v_fmac_f32 v{49+2*j}, v7, v{8+k}')
    S('v_mul_u32_u24 v5, 144, v2')
    S('v_lshl_add_u32 v5, v1, 5, v5')
    S('ds_write_b128 v5, v[48:51]')
    S('ds_write_b128 v5, v[52:55] offset:16')
    S('v_and_b32 v6, 31, v0')
    S('v_lshrrev_b32 v7, 5, v0')
    S('v_mul_u32_u24 v8, 1152, v7')
    S('v_lshl_add_u32 v8, v6, 2, v8')
    S('s_waitcnt lgkmcnt(0)')
    S('s_barrier')
    for k in range(8): S(f'ds_read_b32 v{16+k}, v8 offset:{144*k}')
    for k in range(1, 8): S(f'v_add_f32 v16, v16, v{16+k}')
    S('v_lshlrev_b32 v9, 2, v0')
    S('ds_write_b32 v9, v16 offset:9216')
    S('v_lshlrev_b32 v10, 2, v6')
    S('s_waitcnt lgkmcnt(0)')
    S('s_barrier')
    for k in range(8): S(f'ds_read_b32 v{24+k}, v10 offset:{9216+128*k}')
    for k in range(1, 8): S(f'v_add_f32 v24, v24, v{24+k}')
    S('v_cvt_pk_bf16_f32 v24, v24, v24')
    S('v_lshlrev_b32 v24, 16, v24')
    S('v_add_f32 v25, 1.0, v24')
    S('v_cvt_pk_bf16_f32 v25, v25, v25')
    S('v_lshlrev_b32 v25, 16, v25')
    S('s_sub_u32 s25, s2, 14')
    S('s_cmp_lt_u32 s25, 14')
    S('s_cselect_b32 s26, 1, 0')
    S('s_sub_u32 s25, s2, 56')
    S('s_cmp_lt_u32 s25, 14')
    S('s_cselect_b32 s26, 1, s26')
    S('s_cmp_eq_u32 s26, 1')
    S('s_cselect_b64 vcc, -1, 0')
    S('v_cndmask_b32 v24, v24, v25, vcc')
    S('s_lshl_b32 s27, s2, 7')
    S('v_cmp_gt_u32 vcc, 32, v0')
    S('s_and_saveexec_b64 s[28:29], vcc')
    S('s_cbranch_execz L_k1_end')
    S('buffer_store_dword v24, v10, s[20:23], s27 offen')
    S('v_mul_f32 v25, 0x3db8aa3b, v24')
    S('s_cmp_ge_u32 s2, 28')
    S('s_cbranch_scc1 L_k1_end')
    S(f's_add_u32 s27, s27, {WS_MODQ - WS_MOD}')
    S('buffer_store_dword v25, v10, s[20:23], s27 offen')
    S('L_k1_end:')
    S('s_endpgm')
    return P.finalize(), dict(name='k1_kernel', grid=256, block=256, lds=10240, vgpr=72, sgpr=64, accum=72)
```

```python
from common import *
import struct
def f32(x): return '0x%08x' % struct.unpack('<I', struct.pack('<f', x))[0]

SLOT = 32768
sG, sRB, sW, sP, sS = 3, 4, 5, 6, 7
SX, SK, SV, SWQ, SWO, SMOD, SP1 = 8, 12, 16, 20, 24, 28, 32
sT0, sT1, sT2, sT3 = 36, 37, 38, 39
sSL = [40, 41, 42, 43, 44]
sKT, sKT2, sVT, sVT2 = 45, 46, 47, 48
sDK, sDV = 49, 50
sCNT, sTHR, sW4K, sRET, sQG = 51, 52, 53, 54, 55
sPTR = 56
SDBG = 28

KA_ = [0, 1]; VA_ = [2, 3, 4, 5]; DK, DV = 6, 7
L_ = 8; PS = 12; S_ = 16; P_ = 48; NM = 80; FR = 96; TMP = 120; NT = 6; WA, WD = 126, 127; Q_ = 128
SWM, sWO, sWI = 76, 74, 75
def Sr(kb, qb): return S_ + (kb*4+qb)*4
def Pr(b, qb): return P_ + (b*4+qb)*4
def Qr(qb, st): return Q_ + (qb*8+st)*4
def Or(j, qb): return (j*4+qb)*4
def vr(b, n=4): return f'v[{b}:{b+n-1}]'
def ar(b, n=4): return f'a[{b}:{b+n-1}]'
MF = 'v_mfma_f32_16x16x32_bf16'

RING = [4,5,0,1, 3,4,5,0, 2,3,4,5, 1,2,3,4] + [k % 6 for k in range(16)]
AHEAD = 4
def FRr(f): return FR + 4*RING[f % 32]

def allreduce_kg_ops(x, t, op):
    return [f'v_mov_b32 v{t}, v{x}', f'v_permlane16_swap_b32 v{x}, v{t}', f'{op} v{x}, v{x}, v{t}',
            f'v_mov_b32 v{t}, v{x}', f'v_permlane32_swap_b32 v{x}, v{t}', f'{op} v{x}, v{x}, v{t}']
def allreduce_kg(S, x, t, op):
    for l in allreduce_kg_ops(x, t, op): S(l)

def k_read(f):
    kb, st = f // 8, f % 8
    return [f'ds_read_b128 {vr(FRr(f))}, v{KA_[st & 1]} offset:{kb*8192 + (st >> 1)*1024}']
def v_read(f, jmap=None):
    j = f - 16
    if jmap: j = jmap[j]
    cg, jj = j >> 2, j & 3
    b = FRr(f)
    return [f'ds_read_b64_tr_b16 {vr(b,2)}, v{VA_[jj]} offset:{cg*1024}',
            f'ds_read_b64_tr_b16 {vr(b+2,2)}, v{VA_[jj]} offset:{8192 + cg*1024}']

def dma_kv(which, slot_s, n):
    u, cg = n >> 2, n & 3
    if which == 'K':
        gcg = cg; srd_, vo, so = SK, DK, (sKT, sKT2)[u]
    else:
        gcg = cg ^ (2 * u); srd_, vo, so = SV, DV, (sVT, sVT2)[u]
    return [f's_add_u32 m0, s{slot_s}, {u*16384 + cg*1024 - gcg*128}',
            f'buffer_load_dwordx4 v{vo}, s[{srd_}:{srd_+3}], s{so} offen offset:{gcg*128} lds']

def kv_groups(which, slot_s):
    out = []
    for n in range(8):
        pre, t = dma_kv(which, slot_s, n)
        out.append(dict(pre=[pre], t=[t], post=[], tag=which))
    a, b = (sKT, sKT2) if which == 'K' else (sVT, sVT2)
    out[3]['post'] = [f's_add_u32 s{a}, s{a}, 32768']
    out[7]['post'] = [f's_add_u32 s{b}, s{b}, 32768']
    return out

def emit_groups(S, groups):
    for gr in groups:
        for t in gr['pre']: S(t)
        for t in gr['t']: S(t, tag=gr['tag'])
        for t in gr.get('post', []): S(t)

def mfma_A(first_c=None):
    out = []
    for kb in range(2):
        for st in range(8):
            f = kb*8 + st
            for qb in range(4):
                c = vr(Sr(kb, qb)) if st else (first_c if first_c is not None else vr(NM + 4*qb))
                out.append(f'{MF} {vr(Sr(kb,qb))}, {vr(FRr(f))}, {vr(Qr(qb,st))}, {c}')
    return out
def mfma_B(buf, zero=False, jmap=None):
    out = []
    for n, qb in B_ORDER():
        j = jmap[n] if jmap else n
        out.append(f'{MF} {ar(Or(j,qb))}, {vr(FRr(16+n))}, {vr(Pr(buf,qb))}, {"0" if zero else ar(Or(j,qb))}')
    return out
def B_ORDER():
    if OPT.get('b2', 1):
        return [(2*p + [1,0,0,1,1,0,0,1][i], i // 2) for p in range(8) for i in range(8)]
    return [(n, qb) for n in range(16) for qb in range(4)]

def softmax_linear(buf, kb, qb, tbase):
    s = Sr(kb, qb); t = [TMP + ((tbase + r) % NT) for r in range(4)]
    o = [f'v_exp_f32 v{t[r]}, v{s+r}' for r in range(4)]
    if kb == 0: o.append(f'v_add_f32 v{PS+qb}, v{t[0]}, v{t[1]}')
    else: o += [f'v_add_f32 v{PS+qb}, v{PS+qb}, v{t[0]}', f'v_add_f32 v{PS+qb}, v{PS+qb}, v{t[1]}']
    o.append(f'v_cvt_pk_bf16_f32 v{Pr(buf,qb)+2*kb}, v{t[0]}, v{t[1]}')
    o.append(f'v_add_f32 v{PS+qb}, v{PS+qb}, v{t[2]}')
    o.append(f'v_cvt_pk_bf16_f32 v{Pr(buf,qb)+2*kb+1}, v{t[2]}, v{t[3]}')
    o.append(f'v_add_f32 v{PS+qb}, v{PS+qb}, v{t[3]}')
    return o

def softmax_sched(buf):
    ops = []
    readers = {}
    lastps = {}
    e = 0
    prev_exp = None
    for kb in range(2):
        for qb in range(4):
            lo = kb*32 + 28 + qb + 5
            s = Sr(kb, qb)
            ex = []
            for r in range(4):
                t = TMP + (e % NT); e += 1
                o = Op(f'v_exp_f32 v{t}, v{s+r}', c=2, lo=lo, deps=readers.get(t, []) + ([prev_exp] if prev_exp else []), pri=1)
                o.reg = t; readers[t] = []
                ops.append(o); ex.append(o); prev_exp = o
            def light(txt, srcs, chain=None):
                d = list(srcs) + ([lastps[chain]] if chain is not None and chain in lastps else [])
                o = Op(txt, c=1, lo=lo, deps=d, pri=2, dist=1)
                for x in srcs: readers[x.reg].append(o)
                if chain is not None: lastps[chain] = o
                ops.append(o); return o
            ps = PS + qb
            if kb == 0: light(f'v_add_f32 v{ps}, v{ex[0].reg}, v{ex[1].reg}', ex[:2], qb)
            else:
                light(f'v_add_f32 v{ps}, v{ps}, v{ex[0].reg}', ex[:1], qb)
                light(f'v_add_f32 v{ps}, v{ps}, v{ex[1].reg}', ex[1:2], qb)
            light(f'v_cvt_pk_bf16_f32 v{Pr(buf,qb)+2*kb}, v{ex[0].reg}, v{ex[1].reg}', ex[:2])
            light(f'v_add_f32 v{ps}, v{ps}, v{ex[2].reg}', ex[2:3], qb)
            light(f'v_add_f32 v{ps}, v{ps}, v{ex[3].reg}', ex[3:4], qb)
            light(f'v_cvt_pk_bf16_f32 v{Pr(buf,qb)+2*kb+1}, v{ex[2].reg}, v{ex[3].reg}', ex[2:4])
    t = TMP
    a = Op(f'v_max3_f32 v{t}, v{PS}, v{PS+1}, v{PS+2}', deps=[lastps[0], lastps[1], lastps[2]] + readers[t], pri=2)
    b = Op(f'v_max_f32 v{t}, v{t}, v{PS+3}', deps=[a, lastps[3]], pri=2)
    c = Op(f'v_cmp_nge_f32 vcc, s{sTHR}, v{t}', deps=[b], pri=2)
    return ops + [a, b, c]

def renorm(S, buf, first):
    mx, t, f = TMP, TMP+1, TMP+1
    for qb in range(4):
        a, b = Sr(0, qb), Sr(1, qb)
        S(f'v_max3_f32 v{mx}, v{a}, v{a+1}, v{a+2}')
        S(f'v_max3_f32 v{mx}, v{mx}, v{a+3}, v{b}')
        S(f'v_max3_f32 v{mx}, v{mx}, v{b+1}, v{b+2}')
        S(f'v_max_f32 v{mx}, v{mx}, v{b+3}')
        allreduce_kg(S, mx, t, 'v_max_f32')
        if first:
            for r in range(4): S(f'v_sub_f32 v{NM+4*qb+r}, 0, v{mx}')
        else:
            S(f'v_max_f32 v{mx}, 0, v{mx}')
            for r in range(4): S(f'v_sub_f32 v{NM+4*qb+r}, v{NM+4*qb+r}, v{mx}')
            S(f'v_sub_f32 v{f}, 0, v{mx}')
            S(f'v_exp_f32 v{f}, v{f}')
            S(f'v_mul_f32 v{L_+qb}, v{L_+qb}, v{f}')
            for j in range(16):
                for r in range(4): S(f'v_accvgpr_read_b32 v{TMP+2+r}, a{Or(j,qb)+r}')
                for r in range(4): S(f'v_mul_f32 v{TMP+2+r}, v{TMP+2+r}, v{f}')
                for r in range(4): S(f'v_accvgpr_write_b32 a{Or(j,qb)+r}, v{TMP+2+r}')
        for kb in range(2):
            for r in range(4): S(f'v_sub_f32 v{Sr(kb,qb)+r}, v{Sr(kb,qb)+r}, v{mx}')
        for kb in range(2):
            for txt in softmax_linear(buf, kb, qb, 2): S(txt)

DMA_POS = [2, 6, 14, 18, 26, 30, 38, 46, 54, 62, 70, 78, 86, 94, 102, 106]
def iteration(S, par, roles, dma, nextK=True, label=None, zeroB=False, warm=False):
    KR, VR, KN, D1, D2 = roles
    m = mfma_A() + mfma_B(par, zero=zeroB)
    ops = []
    for f in range(32):
        tgt = f + AHEAD
        g = f*4
        if tgt >= 32 and not nextK: continue
        if tgt == 32:
            ops.append(Op('', fixed=g, waittag='V')); ops.append(Op('s_barrier', fixed=g))
        rd = k_read(tgt % 32) if (tgt % 32) < 16 else v_read(tgt)
        if OPT.get('rdpack', 0):
            g0 = g - 3 if (f >= 16 and f % 2 == 1 and OPT.get('b2', 1)) else g
            for k, t in enumerate(rd): ops.append(Op(t, fixed=g0))
        else:
            g0 = g - 2 if (f >= 16 and f % 2 == 1 and OPT.get('b2', 1)) else g
            for k, t in enumerate(rd): ops.append(Op(t, fixed=g0 + k))
        if tgt == 15:
            a = Op(f's_sub_u32 s{sDK}, s{KN}, s{KR}', lo=0, pri=0); ops.append(a)
            for r in KA_: ops.append(Op(f'v_add_u32 v{r}, s{sDK}, v{r}', lo=g+1, deps=[a], pri=3))
        if tgt == 31:
            a = Op(f's_sub_u32 s{sDV}, s{D1}, s{VR}', lo=0, pri=0); ops.append(a)
            for r in VA_: ops.append(Op(f'v_add_u32 v{r}, s{sDV}, v{r}', lo=g+2, deps=[a], pri=0))
    for f in range(32):
        if f < 16 or f % 2 == 1 or not OPT.get('b2', 1): ops.append(Op([], fixed=f*4 + 3, c=1))
    for k, gr in enumerate(dma):
        g = DMA_POS[k]
        ops.append(Op(gr['pre'], fixed=g-1, c=len(gr['pre'])))
        ops.append(Op(gr['t'], fixed=g, c=2, tag=gr['tag']))
        if gr['post']: ops.append(Op(gr['post'], lo=g+1, pri=3))
    if warm:
        ops.append(Op(f'buffer_load_dword v{WD}, v{WA}, s[{SWM}:{SWM+3}], s{sWO} offen', fixed=58, c=2, tag='warm'))
        ops.append(Op(f's_add_u32 s{sWO}, s{sWO}, s{sWI}', lo=59, pri=3))
    ops += softmax_sched(par ^ 1)
    schedule(S, m, ops, verbose=f'iter {label}')
    S(f's_cbranch_vccnz L_rare_{label}')
    S(f'L_back_{label}:')
    for qb in range(4): S(f'v_add_f32 v{L_+qb}, v{L_+qb}, v{PS+qb}')

def merge_into(S, body, groups, every, start=0):
    gi = 0
    for n, ins in enumerate(body.l):
        S.l.append(ins)
        if n >= start and (n - start) % every == every - 1 and gi < len(groups):
            emit_groups(S, [groups[gi]]); gi += 1
    emit_groups(S, groups[gi:])

def gen_k2(debug=None):
    P = Prog('k2'); S = P.straight()
    S('s_cmp_ge_u32 s2, 256')
    S('s_cbranch_scc1 L_k2_end')
    S(f's_load_dwordx8 s[{sPTR}:{sPTR+7}], s[0:1], 0')
    S(f's_load_dwordx2 s[{sPTR+8}:{sPTR+9}], s[0:1], {KA["wo"]}')
    S(f's_load_dwordx2 s[{sPTR+10}:{sPTR+11}], s[0:1], {KA["ws"]}')
    S(f's_load_dwordx2 s[{sPTR+12}:{sPTR+13}], s[0:1], {KA["w1"]}')
    S(f's_load_dwordx2 s[{sPTR+14}:{sPTR+15}], s[0:1], {KA["w2"]}')
    stamp(S, 0)
    S(f's_and_b32 s{sG}, s2, 7')
    S(f's_lshr_b32 s{sRB}, s2, 3')
    LN_, I16, KG, DQ, L16, T64 = 8, 9, 10, 11, 16, 24
    LQ = [12, 13, 14, 15]
    t0, t1, t2, t3, t4, t5, t6 = 17, 18, 19, 20, 21, 22, 23
    S(f'v_lshrrev_b32 v{t0}, 6, v0')
    S(f'v_and_b32 v{LN_}, 63, v0')
    S(f'v_readfirstlane_b32 s{sW}, v{t0}')
    S(f'v_and_b32 v{I16}, 15, v0')
    S(f'v_bfe_u32 v{KG}, v0, 4, 2')
    S(f'v_lshlrev_b32 v{T64}, 6, v0')
    S(f'v_lshlrev_b32 v{L16}, 4, v{LN_}')
    S(f'v_mul_u32_u24 v{t0}, 896, v{I16}')
    S(f'v_lshl_add_u32 v{t0}, v{KG}, 4, v{t0}')
    S(f's_lshr_b32 s{sP}, s{sW}, 1')
    S(f's_and_b32 s{sS}, s{sW}, 1')
    S(f's_lshl_b32 s{sW4K}, s{sW}, 12')
    S(f's_lshl_b32 s{sT0}, s{sRB}, 6'); S(f's_lshl_b32 s{sT1}, s{sW}, 4'); S(f's_add_u32 s{sT0}, s{sT0}, s{sT1}')
    S(f's_mul_i32 s{sT0}, s{sT0}, 896')
    sHB = sT3
    S(f's_mul_i32 s{sHB}, s{sW}, 14336')
    S(f's_add_u32 s{sHB}, s{sHB}, {3*SLOT}')
    S(f's_add_u32 m0, s{sHB}, 10240')
    S(f's_lshl_b32 s{sQG}, s{sG}, 10')
    S('s_waitcnt lgkmcnt(0)')
    srd(S, SX, sPTR, SZ['x'])
    A0, XP, XF, MB = 32, 40, 96, 208
    for s in range(14):
        S(f'buffer_load_dwordx4 {vr(XP+4*s)}, v{t0}, s[{SX}:{SX+3}], s{sT0} offen offset:{64*s}')
    srd(S, SMOD, sPTR+10, 4096, add=WS_MODQ)
    for k in range(4):
        S(f'buffer_load_dwordx4 v{L16}, s[{SMOD}:{SMOD+3}], 0 offen offset:{1024*k} lds', tag='mod')
    srd(S, SWQ, sPTR+6, SZ['wq'])
    S(f'v_lshrrev_b32 v{t1}, 3, v{LN_}')
    S(f'v_and_b32 v{t2}, 7, v{LN_}')
    S(f'v_and_b32 v{t3}, 6, v{t1}')
    S(f'v_xor_b32 v{t3}, v{t3}, v{t2}')
    S(f'v_lshrrev_b32 v{t4}, 2, v{t1}')
    S(f'v_lshlrev_b32 v{t4}, 3, v{t4}')
    S(f'v_and_b32 v{t5}, 3, v{t1}')
    S(f'v_add_u32 v{t4}, v{t4}, v{t5}')
    S(f'v_lshlrev_b32 v{t4}, 13, v{t4}')
    S(f'v_lshl_add_u32 v{DQ}, v{t3}, 4, v{t4}')
    S(f's_lshl_b32 s{sT1}, s{sW}, 8')
    S(f'v_add_u32 v{DQ}, s{sT1}, v{DQ}')
    def wq_dma(k):
        out = []
        slot = ((k + 1) % 3) * SLOT
        for rg in range(4):
            for cg in range(2):
                pre = [f's_add_u32 m0, s{sW4K}, {slot + (rg>>1)*16384 + ((rg&1)*2+cg)*1024 - cg*128}']
                if cg == 0: pre.append(f's_add_u32 s{sT2}, s{sQG}, {k*262144 + (16*(rg&1) + 4*(rg>>1))*8192}')
                out.append(dict(pre=pre, t=[f'buffer_load_dwordx4 v{DQ}, s[{SWQ}:{SWQ+3}], s{sT2} offen offset:{cg*128} lds'], post=[], tag=f'wq{k}'))
        return out
    emit_groups(S, wq_dma(0))
    S(f's_lshl_b32 s{sT0}, s{sG}, 20')
    for d, ptr in ((SK, sPTR+2), (SV, sPTR+4)):
        S(f's_add_u32 s{d}, s{ptr}, s{sT0}'); S(f's_addc_u32 s{d+1}, s{ptr+1}, 0')
        S(f's_mov_b32 s{d+2}, {1<<20}'); S(f's_mov_b32 s{d+3}, 0x00020000')
    srd(S, SWO, sPTR+8, SZ['wo'])
    srd(S, SP1, sPTR+10, 256*57344, add=WS_P1)
    S(f'v_lshlrev_b32 v{t4}, 9, v{t1}')
    S(f'v_add_u32 v{t4}, s{sW4K}, v{t4}')
    S(f'v_lshl_add_u32 v{DV}, v{t3}, 4, v{t4}')
    S(f'v_lshrrev_b32 v{t5}, 1, v{t1}')
    S(f's_lshl_b32 s{sT1}, s{sS}, 2')
    S(f'v_or_b32 v{t5}, s{sT1}, v{t5}')
    S(f'v_xor_b32 v{t5}, v{t5}, v{t2}')
    S(f'v_lshl_add_u32 v{DK}, v{t5}, 4, v{t4}')
    S(f'v_and_b32 v{t0}, 1, v{KG}')
    S(f'v_lshlrev_b32 v{t0}, 2, v{t0}')
    S(f'v_lshrrev_b32 v{t1}, 2, v{I16}')
    S(f'v_add_u32 v{t0}, v{t0}, v{t1}')
    S(f'v_lshrrev_b32 v{t1}, 1, v{t0}')
    S(f'v_and_b32 v{t2}, 3, v{I16}')
    S(f'v_lshlrev_b32 v{t2}, 3, v{t2}')
    S(f'v_lshl_add_u32 v{t2}, v{t0}, 7, v{t2}')
    S(f'v_lshrrev_b32 v{t3}, 1, v{KG}')
    S(f's_lshl_b32 s{sT0}, s{sS}, 14')
    S(f's_add_u32 s{sT1}, s{sT0}, {2*SLOT}')
    for jj in range(4):
        S(f'v_xor_b32 v{t4}, {jj}, v{t1}')
        S(f'v_lshl_add_u32 v{t4}, v{t4}, 5, v{t2}')
        S(f'v_lshl_add_u32 v{LQ[jj]}, v{t3}, 11, v{t4}')
        S(f'v_add_u32 v{LQ[jj]}, s{sW4K}, v{LQ[jj]}')
        S(f'v_lshl_add_u32 v{VA_[jj]}, v{t3}, 12, v{t4}')
        S(f'v_add_u32 v{VA_[jj]}, s{sT1}, v{VA_[jj]}')
    S(f'v_lshrrev_b32 v{t0}, 3, v{I16}')
    S(f'v_and_b32 v{t1}, 7, v{I16}')
    S(f'v_lshrrev_b32 v{t2}, 1, v{t1}')
    S(f'v_lshl_or_b32 v{t2}, v{t0}, 2, v{t2}')
    S(f'v_xor_b32 v{t2}, v{t2}, v{KG}')
    S(f'v_lshlrev_b32 v{t2}, 4, v{t2}')
    S(f'v_lshl_add_u32 v{t2}, v{t1}, 7, v{t2}')
    S(f'v_lshl_add_u32 v{t2}, v{t0}, 12, v{t2}')
    S(f'v_add_u32 v{KA_[0]}, s{sT0}, v{t2}')
    S(f'v_xor_b32 v{KA_[1]}, 64, v{KA_[0]}')
    S(f's_mov_b32 s{sKT}, 0'); S(f's_mov_b32 s{sKT2}, 16384'); S(f's_mov_b32 s{sVT}, 0'); S(f's_mov_b32 s{sVT2}, 16384')
    for k in range(5): S(f's_add_u32 s{sSL[k]}, s{sW4K}, {k*SLOT}')
    S(f's_mov_b32 s{sTHR}, {f32(2.0**24)}')
    MR, HW = t5, t6
    S(f'v_lshlrev_b32 v{MR}, 5, v{KG}')
    S(f'v_add_u32 v{MR}, s{sHB}, v{MR}')
    S(f'v_add_u32 v{HW}, s{sHB}, v{L16}')
    S(f's_lshl_b32 s{sT0}, s{sG}, 5'); S(f's_add_u32 s{sT0}, s{sT0}, s{sRB}'); S(f's_mul_i32 s{sT0}, s{sT0}, 14336')
    S(f's_mul_i32 s{sT1}, s{sS}, 7168'); S(f's_add_u32 s{sT0}, s{sT0}, s{sT1}')
    S(f's_add_u32 s{SWM}, s{sPTR+8}, s{sT0}'); S(f's_addc_u32 s{SWM+1}, s{sPTR+9}, 0')
    S(f's_mov_b32 s{SWM+2}, 7168'); S(f's_mov_b32 s{SWM+3}, 0x00020000')
    S(f's_mov_b32 s{sWO}, 0'); S(f's_mov_b32 s{sWI}, 2048'); S(f's_mov_b32 s{sDK}, 1024')
    S(f's_cmp_ge_u32 s{sW}, 2')
    S('s_cbranch_scc1 L_k2_wm')
    S(f's_cmp_eq_u32 s{sW}, 0')
    S(f's_cselect_b32 s{SWM}, s{SK}, s{SV}'); S(f's_cselect_b32 s{SWM+1}, s{SK+1}, s{SV+1}')
    S(f's_mov_b32 s{SWM+2}, {1<<20}')
    S(f's_lshl_b32 s{sWO}, s{sRB}, 10'); S(f's_add_u32 s{sWO}, s{sWO}, {8*32768}')
    S(f's_mov_b32 s{sWI}, 65536'); S(f's_mov_b32 s{sDK}, 32768')
    S('L_k2_wm:')
    S(f'v_mul_lo_u32 v{T64}, v{KG}, s{sDK}')
    S(f'v_lshl_add_u32 v{T64}, v{I16}, 6, v{T64}')
    S(f'v_cmp_gt_u32 vcc, 32, v{LN_}'); S(f'v_mov_b32 v{t0}, 0x7fffffff'); S(f'v_cndmask_b32 v{T64}, v{t0}, v{T64}, vcc')
    warm = []

    if STAMPS['on']: S(f'v_mov_b32 v{A0}, v{XP+55}')
    stamp(S, 1)
    B = Seq()
    for d in range(56):
        B(f'v_lshlrev_b32 v{XF+2*d}, 16, v{XP+d}')
        B(f'v_and_b32 v{XF+2*d+1}, 0xffff0000, v{XP+d}')
        if d % 2 == 1:
            k = (d // 2) % 4
            if d < 8: B(f'v_pk_add_f32 {vr(A0+2*k,2)}, {vr(XF+2*d-2,2)}, {vr(XF+2*d,2)}')
            else:
                B(f'v_pk_add_f32 {vr(A0+2*k,2)}, {vr(A0+2*k,2)}, {vr(XF+2*d-2,2)}')
                B(f'v_pk_add_f32 {vr(A0+2*((k+2)%4),2)}, {vr(A0+2*((k+2)%4),2)}, {vr(XF+2*d,2)}')
    B(f'v_pk_add_f32 {vr(A0,2)}, {vr(A0,2)}, {vr(A0+2,2)}')
    B(f'v_pk_add_f32 {vr(A0+4,2)}, {vr(A0+4,2)}, {vr(A0+6,2)}')
    B(f'v_pk_add_f32 {vr(A0,2)}, {vr(A0,2)}, {vr(A0+4,2)}')
    B(f'v_add_f32 v{A0}, v{A0}, v{A0+1}')
    allreduce_kg(B, A0, A0+1, 'v_add_f32')
    B(f'v_mul_f32 v{A0}, {f32(-1.0/448)}, v{A0}')
    B(f'v_mov_b32 v{A0+1}, v{A0}')
    B0 = XP
    for d in range(56):
        B(f'v_pk_add_f32 {vr(XF+2*d,2)}, {vr(XF+2*d,2)}, {vr(A0,2)}')
        if d >= 1:
            e = d - 1
            if e < 4: B(f'v_pk_mul_f32 {vr(B0+2*e,2)}, {vr(XF+2*e,2)}, {vr(XF+2*e,2)}')
            else: B(f'v_pk_fma_f32 {vr(B0+2*(e%4),2)}, {vr(XF+2*e,2)}, {vr(XF+2*e,2)}, {vr(B0+2*(e%4),2)}')
    B(f'v_pk_fma_f32 {vr(B0+6,2)}, {vr(XF+110,2)}, {vr(XF+110,2)}, {vr(B0+6,2)}')
    B(f'v_pk_add_f32 {vr(B0,2)}, {vr(B0,2)}, {vr(B0+2,2)}')
    B(f'v_pk_add_f32 {vr(B0+4,2)}, {vr(B0+4,2)}, {vr(B0+6,2)}')
    B(f'v_pk_add_f32 {vr(B0,2)}, {vr(B0,2)}, {vr(B0+4,2)}')
    B(f'v_add_f32 v{A0}, v{B0}, v{B0+1}')
    B.waittag('mod')
    def mod_regs(s):
        if s < 10: return MB + 16*(s % 3)
        return {10: MB, 11: MB+16, 12: MB+32, 13: B0+8}[s]
    def mod_read(s):
        b = mod_regs(s)
        B(f'ds_read_b128 {vr(b)}, v{MR} offset:{10240 + s*128}')
        B(f'ds_read_b128 {vr(b+4)}, v{MR} offset:{10240 + s*128 + 16}')
        B(f'ds_read_b128 {vr(b+8)}, v{MR} offset:{10240 + 1792 + s*128}')
        B(f'ds_read_b128 {vr(b+12)}, v{MR} offset:{10240 + 1792 + s*128 + 16}')
    def mod_apply(s):
        b = mod_regs(s); x = XF + 8*s
        for k in range(4): B(f'v_pk_mul_f32 {vr(x+2*k,2)}, {vr(x+2*k,2)}, {vr(A0,2)}')
        for k in range(4): B(f'v_pk_fma_f32 {vr(x+2*k,2)}, {vr(x+2*k,2)}, {vr(b+8+2*k,2)}, {vr(b+2*k,2)}')
        h = B0 + 4*(s % 2)
        for k in range(4): B(f'v_cvt_pk_bf16_f32 v{h+k}, v{x+2*k}, v{x+2*k+1}')
        B(f'ds_write_b128 v{HW}, {vr(h)} offset:{s*1024}')
    mod_read(0); mod_read(1); mod_read(13)
    allreduce_kg(B, A0, A0+1, 'v_add_f32')
    B(f'v_mov_b32 v{A0+2}, {f32(1e-5)}')
    B(f'v_fmac_f32 v{A0+2}, {f32(1.0/448)}, v{A0}')
    B(f'v_rsq_f32 v{A0}, v{A0+2}')
    B(f'v_mov_b32 v{A0+1}, v{A0}')
    order = list(range(10))
    for s in range(10):
        if s + 2 < 10: mod_read(s + 2)
        mod_apply(s)
        if s == 7: pass
    for s in (10, 11, 12): mod_read(s)
    for s in (13, 10, 11, 12): mod_apply(s)
    merge_into(S, B, wq_dma(1) + wq_dma(2) + warm, every=12, start=8)
    S(f'v_add_u32 v{t0}, {3*SLOT}, v{L16}')
    S('s_waitcnt lgkmcnt(0)')
    S('s_barrier')
    stamp(S, 2)
    def Hr(qb, s): return vr(32 + ((s & 1)*4+qb)*4)
    QF = 96
    def qfr(n): return QF + 4*(n % 8)
    cur = [0]
    def q_reads(n):
        k, j = n // 8, n % 8
        cg, jj = j >> 2, j & 3
        slot = ((k + 1) % 3) * SLOT
        base = slot // 65536 * 65536
        out = []
        if j == 0:
            out.append(dict(waittag=f'wq{k}'))
            d = base - cur[0]
            if d:
                for a in LQ: out.append(dict(t=f'v_add_u32 v{a}, {d & 0xffffffff}, v{a}'))
            cur[0] = base
        o = slot - base + cg*1024
        out.append(dict(t=f'ds_read_b64_tr_b16 {vr(qfr(n),2)}, v{LQ[jj]} offset:{o}'))
        out.append(dict(t=f'ds_read_b64_tr_b16 {vr(qfr(n)+2,2)}, v{LQ[jj]} offset:{o+16384}'))
        return out
    def h_read(s, qb):
        return f'ds_read_b128 {Hr(qb,s)}, v{t0} offset:{qb*14336 + s*1024}'
    QAH = 5
    for qb in range(4): S(h_read(0, qb))
    for n in range(QAH):
        for f in q_reads(n):
            if 'waittag' in f: S.waittag(f['waittag'])
            else: S(f['t'])
    stamp(S, 3)
    QA = 128
    m = []; F = []
    for n in range(112):
        k, j = n // 8, n % 8
        for qb in range(4):
            acc = vr(QA + Or(j, qb))
            m.append(f'{MF} {acc}, {vr(qfr(n))}, {Hr(qb,k)}, {acc if k else "0"}')
        if n + QAH < 112:
            for f in q_reads(n + QAH):
                f.update(lo=n*4, c=1, chain='rd'); F.append(f)
        if k + 1 < 14 and j < 4:
            F.append(dict(t=h_read(k + 1, j), lo=n*4 + 2, c=1, chain='rd'))
    for k in range(13):
        groups = wq_dma(k + 3) if k + 3 < 14 else kv_groups('K', sSL[k - 11])
        for i, gr in enumerate(groups):
            g = (k + 1)*32 + 2 + 3*i
            F.append(dict(t=gr['pre'], lo=g-1, c=1, chain='dma'))
            F.append(dict(t=gr['t'] + gr['post'], lo=g, c=2, tag=gr['tag'], chain='dma'))
    F.sort(key=lambda f: f['lo'])
    interleave(S, m, F, cap=3)
    stamp(S, 4)
    emit_groups(S, kv_groups('V', sSL[2]))
    S(f'v_lshlrev_b32 v{t0}, 4, v{I16}')
    S(f'v_lshrrev_b32 v{t1}, 1, v{KG}')
    S(f'v_lshl_add_u32 v{t0}, v{t1}, 8, v{t0}')
    S(f'v_and_b32 v{t1}, 1, v{KG}')
    S(f'v_lshl_add_u32 v{t0}, v{t1}, 3, v{t0}')
    S(f's_lshl_b32 s{sT0}, s{sP}, 15'); S(f's_add_u32 s{sT0}, s{sT0}, {3*SLOT}')
    S(f's_lshl_b32 s{sT1}, s{sS}, 12'); S(f's_add_u32 s{sT1}, s{sT1}, s{sT0}')
    S(f'v_add_u32 v{t0}, s{sT1}, v{t0}')
    S(f'v_add_u32 v{TMP}, s{sT0}, v{L16}')
    S(f'v_mov_b32 v{TMP+1}, v{L16}')
    S(f'v_mov_b32 v{WA}, v{T64}')
    for j in range(8):
        for qb in range(4):
            a = QA + Or(j, qb); t = 32 + 2*(j*4+qb)
            S(f'v_cvt_pk_bf16_f32 v{t}, v{a}, v{a+1}')
            S(f'v_cvt_pk_bf16_f32 v{t+1}, v{a+2}, v{a+3}')
    S('s_barrier')
    for j in range(8):
        for qb in range(4):
            t = 32 + 2*(j*4+qb)
            S(f'ds_write_b64 v{t0}, {vr(t,2)} offset:{(qb*8 + (j>>1))*1024 + (j&1)*512}')
    S.waittag('K')
    S('s_waitcnt lgkmcnt(0)')
    S('s_barrier')
    for f in range(AHEAD):
        for t in k_read(f): S(t)
    for st in range(8):
        for qb in range(4):
            S(f'ds_read_b128 {vr(Qr(qb,st))}, v{TMP} offset:{(qb*8+st)*1024}')
    if debug: srd(S, SDBG, sPTR+10, 32 << 20, add=WS_DBG)
    if debug == 'q':
        S(f's_lshl_b32 s{sT0}, s2, 2'); S(f's_add_u32 s{sT0}, s{sT0}, s{sW}'); S(f's_lshl_b32 s{sT0}, s{sT0}, 15')
        for f in range(32):
            S(f'buffer_store_dwordx4 {vr(Q_+4*f)}, v{TMP+1}, s[{SDBG}:{SDBG+3}], s{sT0} offen')
            S(f's_add_u32 s{sT0}, s{sT0}, 1024')
        S('s_waitcnt vmcnt(0)')
    F = []
    for f in range(16 - AHEAD):
        F.append(dict(t=k_read(f + AHEAD), lo=f*4, c=1))
    F.append(dict(t='s_barrier', lo=33, c=1, chain='dma'))
    for i, gr in enumerate(kv_groups('K', sSL[3])):
        F.append(dict(t=gr['pre'], lo=34 + 3*i, c=1, chain='dma'))
        F.append(dict(t=gr['t'] + gr['post'], lo=35 + 3*i, c=2, tag=gr['tag'], chain='dma'))
    F.sort(key=lambda f: f['lo'])
    interleave(S, mfma_A(first_c='0'), F, cap=3)
    for a in KA_: S(f'v_add_u32 v{a}, {SLOT}, v{a}')
    for f in range(AHEAD):
        for t in k_read(f): S(t)
    S.waittag('V')
    S('s_barrier')
    renorm(S, 0, True)
    for qb in range(4): S(f'v_mov_b32 v{L_+qb}, v{PS+qb}')
    S(f's_mov_b32 s{sCNT}, 0')
    stamp(S, 5)
    if STAMPS['on']: S('s_waitcnt lgkmcnt(0)')

    def perm(r): KR, VR, KN, D1, D2 = r; return (KN, D1, D2, KR, VR)
    def both(r): return kv_groups('V', r[3]) + kv_groups('K', r[4])
    r0 = (sSL[1], sSL[2], sSL[3], sSL[4], sSL[0])
    r1 = perm(r0); r2 = perm(r1); r3 = perm(r2); r4 = perm(r3)
    iteration(S, 0, r0, both(r0), label='f', zeroB=True)
    iteration(S, 1, r1, both(r1), label='g')
    Lp = P.loop()
    Lp('.p2align 6'); Lp('L_k2_loop:')
    iteration(Lp, 0, r2, both(r2), label='a', warm=True)
    iteration(Lp, 1, r3, both(r3), label='b')
    mp = {r2[k]: r4[k] for k in range(5)}
    start = r2[0]
    Lp(f's_mov_b32 s{sT0}, s{start}')
    d = start
    while mp[d] != start:
        Lp(f's_mov_b32 s{d}, s{mp[d]}'); d = mp[d]
    Lp(f's_mov_b32 s{d}, s{sT0}')
    Lp(f's_add_u32 s{sCNT}, s{sCNT}, 1')
    Lp(f's_cmp_lt_u32 s{sCNT}, 13')
    Lp('s_cbranch_scc1 L_k2_loop')
    S = P.straight()
    iteration(S, 0, r2, both(r2), label='c')
    iteration(S, 1, r3, kv_groups('V', r3[3]), label='d')
    iteration(S, 0, r4, kv_groups('V', r4[3]), nextK=False, label='e')
    return P, S

RARE = {'f': 1, 'g': 0, 'a': 1, 'b': 0, 'c': 1, 'd': 0, 'e': 1}
```

```python
from k2 import *


def proj_out(S, nsteps, bfrag_addr, srd_w, s_wbase, row_bytes, ring_s, ring_v, WV, ACC, srd_out, s_out, VO, VO2,
             pre_issued, tagp, BF=16, AF=48, stamp_idx=8):
    NR = len(ring_s)
    def w_dma(k):
        out = []
        for n in range(7):
            pre = [f's_add_u32 m0, s{ring_s[k % NR]}, {n*1024}']
            if n == 0: pre.append(f's_add_u32 s{sT0}, s{s_wbase}, {k*32*row_bytes}')
            out.append(dict(pre=pre, t=[f'buffer_load_dwordx4 v{WV+n}, s[{srd_w}:{srd_w+3}], s{sT0} offen lds'], tag=f'{tagp}{k}'))
        return out
    def afr(n): return AF + 4*(n % 8)
    def bfr(k, qb): return BF + ((k & 1)*4 + qb)*4
    def a_reads(n):
        k, i = n // 7, n % 7
        out = []
        if i == 0: out.append(dict(waittag=f'{tagp}{k}'))
        out.append(dict(t=f'ds_read_b64_tr_b16 {vr(afr(n),2)}, v{ring_v[k % NR]} offset:{i*32}'))
        out.append(dict(t=f'ds_read_b64_tr_b16 {vr(afr(n)+2,2)}, v{ring_v[k % NR]} offset:{3584 + i*32}'))
        return out
    def b_read(k, qb):
        a, o = bfrag_addr(k, qb)
        return f'ds_read_b128 {vr(bfr(k,qb))}, v{a} offset:{o}'
    AH = 5
    for qb in range(4): S(b_read(0, qb))
    for n in range(AH):
        for f in a_reads(n):
            if 'waittag' in f: S.waittag(f['waittag'])
            else: S(f['t'])
    m = []; F = []
    N = nsteps * 7
    for n in range(N):
        k, i = n // 7, n % 7
        for qb in range(4):
            acc = vr(ACC + (i*4+qb)*4)
            m.append(f'{MF} {acc}, {vr(afr(n))}, {vr(bfr(k,qb))}, {acc if k else "0"}')
        if n + AH < N:
            for f in a_reads(n + AH):
                f.update(lo=n*4, c=1, chain='rd'); F.append(f)
        if k + 1 < nsteps and i < 2:
            F.append(dict(t=b_read(k+1, 2*i), lo=n*4 + 2, c=1, chain='rd'))
            F.append(dict(t=b_read(k+1, 2*i+1), lo=n*4 + 3, c=1, chain='rd'))
    for k in range(nsteps):
        if k + NR < nsteps and k + NR >= pre_issued:
            for i, gr in enumerate(w_dma(k + NR)):
                g = (k + 1)*28 + 4*i + 2
                F.append(dict(t=gr['pre'], lo=g-1, c=1, chain='dma'))
                F.append(dict(t=gr['t'], lo=g, c=2, tag=gr['tag'], chain='dma'))
    F.sort(key=lambda f: f['lo'])
    interleave(S, m, F, cap=3)
    stamp(S, stamp_idx)
    n = 0
    for qb in range(4):
        S(f's_add_u32 s{sT0}, s{s_out}, {2*qb*57344}')
        for ip in range(3):
            t = BF + 4*(n % 8); n += 1
            for hlf in range(2):
                a = ACC + ((2*ip+hlf)*4+qb)*4
                S(f'v_cvt_pk_bf16_f32 v{t+2*hlf}, v{a}, v{a+1}')
                S(f'v_cvt_pk_bf16_f32 v{t+2*hlf+1}, v{a+2}, v{a+3}')
            S(f'buffer_store_dwordx4 {vr(t)}, v{VO}, s[{srd_out}:{srd_out+3}], s{sT0} offen offset:{ip*512} {OPT.get("pst", "sc0 sc1")}')
        t = BF + 4*(n % 8); n += 1
        a = ACC + (6*4+qb)*4
        S(f'v_cvt_pk_bf16_f32 v{t}, v{a}, v{a+1}')
        S(f'v_cvt_pk_bf16_f32 v{t+1}, v{a+2}, v{a+3}')
        S(f'buffer_store_dwordx2 {vr(t,2)}, v{VO2}, s[{srd_out}:{srd_out+3}], s{sT0} offen {OPT.get("pst", "sc0 sc1")}')
    return w_dma

def proj_lane_setup(S, LN_, I16, KG, WV, LT, VO, VO2, row_bytes, t0, t1):
    S(f's_mul_i32 s{sT1}, s{sW}, 224')
    for n in range(7):
        S(f'v_add_u32 v{t0}, {64*n}, v{LN_}')
        S(f'v_mul_u32_u24 v{t1}, 4682, v{t0}')
        S(f'v_lshrrev_b32 v{t1}, 16, v{t1}')
        S(f'v_mul_u32_u24 v{WV+n}, {row_bytes - 224}, v{t1}')
        S(f'v_lshl_add_u32 v{WV+n}, v{t0}, 4, v{WV+n}')
        S(f'v_add_u32 v{WV+n}, s{sT1}, v{WV+n}')
    S(f'v_lshrrev_b32 v{t0}, 2, v{I16}')
    S(f'v_lshl_add_u32 v{t0}, v{KG}, 2, v{t0}')
    S(f'v_mul_u32_u24 v{t0}, 224, v{t0}')
    S(f'v_and_b32 v{t1}, 3, v{I16}')
    S(f'v_lshl_add_u32 v{LT}, v{t1}, 3, v{t0}')
    S(f'v_lshrrev_b32 v{t0}, 3, v{I16}')
    S(f'v_mul_u32_u24 v{t0}, 57344, v{t0}')
    S(f'v_and_b32 v{t1}, 7, v{I16}')
    S(f'v_lshl_add_u32 v{t1}, v{KG}, 3, v{t1}')
    S(f'v_lshl_add_u32 v{VO}, v{t1}, 4, v{t0}')
    S(f'v_lshl_add_u32 v{VO2}, v{t1}, 3, v{t0}')
    S(f'v_add_u32 v{VO2}, 1536, v{VO2}')

def gen_k2_full(debug=None):
    P, S = gen_k2(debug)
    del S.l[-4:]
    LN_, I16, KG = 16, 17, 18
    WV = 20; LT = 27; VO = 28; VO2 = 29; L16 = [30, 31, 32]; RV = [33, 34, 35]
    XW, XR, t0, t1 = 36, 37, 38, 39
    SC = 40
    MLW, MLR = 0, 1
    for qb in range(4): S(f'v_add_f32 v{NM+4*qb+1}, v{L_+qb}, v{PS+qb}')
    S(f'v_mbcnt_lo_u32_b32 v{LN_}, -1, 0')
    S(f'v_mbcnt_hi_u32_b32 v{LN_}, -1, v{LN_}')
    S(f's_lshl_b32 s{sT1}, s{sW}, 11'); S(f's_add_u32 s{sT1}, s{sT1}, {3*SLOT}')
    S(f'v_lshlrev_b32 v{MLW}, 3, v{LN_}')
    S(f'v_add_u32 v{MLW}, s{sT1}, v{MLW}')
    for qb in range(4): S(f'ds_write_b64 v{MLW}, {vr(NM+4*qb,2)} offset:{qb*512}')
    S(f'v_xor_b32 v{MLR}, 2048, v{MLW}')
    S.waittag('V')
    S('s_waitcnt lgkmcnt(0)')
    S('s_barrier')
    jmap = list(range(8, 16)) + list(range(8))
    for qb in range(4): S(f'ds_read_b64 {vr(NM+4*qb+2,2)}, v{MLR} offset:{qb*512}')
    for f in range(16, 16 + AHEAD):
        for t in v_read(f, jmap): S(t)
    sR = [40, 41, 42]; sXW, sXR, sWB, sOUT = 43, 44, 45, 46
    SW1, SW2 = SX, SWQ
    U = Seq()
    U(f'v_lshlrev_b32 v{L16[0]}, 4, v{LN_}')
    U(f's_lshl_b32 s{sXW}, s{sW}, 15')
    U(f'v_add_u32 v{XW}, s{sXW}, v{L16[0]}')
    n_early = len(U.l)
    for qb in range(4):
        n0, l0, n1, l1 = NM+4*qb, NM+4*qb+1, NM+4*qb+2, NM+4*qb+3
        U(f'v_min_f32 v{t0}, v{n0}, v{n1}')
        U(f'v_sub_f32 v{n0}, v{t0}, v{n0}')
        U(f'v_sub_f32 v{n1}, v{t0}, v{n1}')
        U(f'v_exp_f32 v{n0}, v{n0}')
        U(f'v_exp_f32 v{n1}, v{n1}')
        U(f'v_mul_f32 v{l0}, v{l0}, v{n0}')
        U(f'v_fmac_f32 v{l0}, v{l1}, v{n1}')
        if qb == 3: n_ml = len(U.l)
        allreduce_kg(U, l0, l1, 'v_add_f32')
        U(f'v_rcp_f32 v{l0}, v{l0}')
        U(f'v_mul_f32 v{SC+4*qb}, v{n0}, v{l0}')
        U(f'v_mul_f32 v{SC+4*qb+1}, v{n0}, v{l0}')
        U(f'v_mul_f32 v{SC+4*qb+2}, v{n1}, v{l0}')
        U(f'v_mul_f32 v{SC+4*qb+3}, v{n1}, v{l0}')
    U(f'v_and_b32 v{I16}, 15, v{LN_}')
    U(f'v_lshrrev_b32 v{KG}, 4, v{LN_}')
    proj_lane_setup(U, LN_, I16, KG, WV, LT, VO, VO2, 896, t0, t1)
    U(f's_xor_b32 s{sXR}, s{sXW}, {SLOT}')
    U(f's_lshl_b32 s{sR[0]}, s{sW}, 13'); U(f's_add_u32 s{sR[0]}, s{sR[0]}, {4*SLOT}')
    U(f's_add_u32 s{sR[1]}, s{sXR}, 16384'); U(f's_add_u32 s{sR[2]}, s{sXR}, {16384+7168}')
    U(f's_mul_i32 s{sWB}, s{sG}, {512*896}')
    U(f's_mul_i32 s{sOUT}, s{sRB}, {8*57344}')
    U(f's_mul_i32 s{sT1}, s{sG}, 7168'); U(f's_add_u32 s{sOUT}, s{sOUT}, s{sT1}')
    U(f's_mul_i32 s{sT1}, s{sW}, 1792'); U(f's_add_u32 s{sOUT}, s{sOUT}, s{sT1}')
    for k in range(3): U(f'v_add_u32 v{RV[k]}, s{sR[k]}, v{LT}')
    U(f'v_add_u32 v{L16[1]}, 65536, v{L16[0]}')
    U(f'v_add_u32 v{XR}, s{sXR}, v{L16[0]}')
    srd(U, SW1, sPTR+12, SZ['w1']); srd(U, SW2, sPTR+14, SZ['w2'])
    U(f's_lshl_b32 s{sT2}, s{sW}, 6'); U(f'v_add_u32 v{t0}, s{sT2}, v{LN_}')
    if OPT.get('k4map', 2) == 1:
        sh, nthr, gmul, w2b = 3, 112, 448, 7*896
        U(f's_mov_b32 s{sDK}, s{sG}')
    else:
        sh, nthr, gmul, w2b = 4, 224, 896, 14*896
        U(f's_and_b32 s{sDK}, s{sG}, 3')
    U(f'v_lshrrev_b32 v{t1}, {sh}, v{t0}'); U(f'v_mul_u32_u24 v{t1}, 3584, v{t1}')
    U(f'v_and_b32 v56, {(1<<sh)-1}, v{t0}'); U(f'v_lshl_add_u32 v{t1}, v56, 6, v{t1}')
    U(f'v_cmp_gt_u32 vcc, {nthr}, v{t0}'); U(f'v_mov_b32 v57, 0x7fffffff'); U(f'v_cndmask_b32 v{t1}, v57, v{t1}, vcc')
    U(f's_mul_i32 s{sT2}, s{sRB}, {14*3584}'); U(f's_mul_i32 s{sT3}, s{sDK}, {gmul}'); U(f's_add_u32 s{sT2}, s{sT2}, s{sT3}')
    U(f'buffer_load_dword v58, v{t1}, s[{SW1}:{SW1+3}], s{sT2} offen')
    U(f'v_lshlrev_b32 v{t0}, 6, v{t0}'); U(f'v_cndmask_b32 v{t0}, v57, v{t0}, vcc')
    U(f's_lshl_b32 s{sT2}, s{sDK}, 5'); U(f's_add_u32 s{sT2}, s{sT2}, s{sRB}'); U(f's_mul_i32 s{sT2}, s{sT2}, {w2b}')
    U(f'buffer_load_dword v59, v{t0}, s[{SW2}:{SW2+3}], s{sT2} offen')
    F = []
    for n in range(16 - AHEAD):
        for k, t in enumerate(v_read(16 + n + AHEAD, jmap)): F.append(dict(t=t, lo=n*4 + k, hi=n*4 + k, c=1))
    for n in range(16): F.append(dict(t=[], lo=n*4+3, hi=n*4+3, c=1))
    F.append(dict(t=f'v_mov_b32 v{t1}, v{NM+15}', lo=6, hi=6, c=1))
    F.append(dict(t='s_barrier', lo=6, hi=6, c=1))
    for gi, (n, qb) in enumerate(B_ORDER()[:32]):
        if True:
            g = gi + 7
            F.append(dict(t=f'ds_write_b128 v{XW}, {ar(Or(8+n,qb))} offset:{(n*4+qb)*1024}', lo=g, hi=g, c=1))
    for ins in U.l: F.append(dict(t=ins.text, lo=0, c=2 if ins.kind == 'trans' else 1, chain='u'))
    interleave(S, mfma_B(1, jmap=jmap), F, cap=3)
    stamp(S, 6)
    S('s_waitcnt lgkmcnt(0)')
    S('s_barrier')
    RB = 128
    for jj in range(8):
        for qb in range(4):
            S(f'ds_read_b128 {vr(RB+(jj*4+qb)*4)}, v{XR} offset:{(jj*4+qb)*1024}')
    def wdma(k):
        for n in range(7):
            S(f's_add_u32 m0, s{sR[k]}, {n*1024}')
            if n == 0: S(f's_add_u32 s{sT1}, s{sWB}, {k*32*896}')
            S(f'buffer_load_dwordx4 v{WV+n}, s[{SWO}:{SWO+3}], s{sT1} offen lds', tag=f'wo{k}')
    wdma(0)
    n = 0
    for u in range(4):
        for qb in range(4):
            t = 64 + 12*(n % 4); n += 1
            for hlf in range(2):
                jj = 2*u + hlf
                o = t + 4*hlf
                for r in range(4): S(f'v_accvgpr_read_b32 v{o+r}, a{Or(jj,qb)+r}')
                rb = RB + (jj*4+qb)*4
                for k in range(2): S(f'v_pk_mul_f32 {vr(o+2*k,2)}, {vr(o+2*k,2)}, {vr(SC+4*qb,2)}')
                for k in range(2): S(f'v_pk_fma_f32 {vr(o+2*k,2)}, {vr(rb+2*k,2)}, {vr(SC+4*qb+2,2)}, {vr(o+2*k,2)}')
            for k in range(4): S(f'v_cvt_pk_bf16_f32 v{t+8+k}, v{t+2*k}, v{t+2*k+1}')
            S(f'ds_write_b128 v{XR}, {vr(t+8)} offset:{(u*4+qb)*1024}')
            if u == 1 and qb == 0:
                S(f'v_mov_b32 v{t0}, v{RB+127}')
                wdma(1)
            if u == 2 and qb == 0: wdma(2)
            if debug == 'o':
                if n == 1:
                    S(f's_lshl_b32 s{sT2}, s2, 2'); S(f's_add_u32 s{sT2}, s{sT2}, s{sW}'); S(f's_lshl_b32 s{sT2}, s{sT2}, 14')
                S(f'buffer_store_dwordx4 {vr(t+8)}, v{L16[0]}, s[{SDBG}:{SDBG+3}], s{sT2} offen')
                S(f's_add_u32 s{sT2}, s{sT2}, 1024')
                S('s_waitcnt vmcnt(0)')
    S('s_waitcnt lgkmcnt(0)')
    S('s_barrier')
    stamp(S, 7)
    def baddr(k, qb):
        a = ((k >> 2) ^ 1)*SLOT + ((k & 3)*4 + qb)*1024
        return L16[a // 65536], a % 65536
    proj_out(S, 16, baddr, SWO, sWB, 896, sR, RV, WV, 128, SP1, sOUT, VO, VO2, 3, 'wo', BF=64, AF=96)
    if STAMPS['on']: S('s_waitcnt vmcnt(0)')
    stamp(S, 9)
    stamp_flush(S, 10, 1, sW, sPTR+10)
    S('L_k2_end:')
    S('s_endpgm')
    X = P.outofline()
    for i, (lab, buf) in enumerate(RARE.items()):
        X(f'L_rare_{lab}:')
        X(f's_mov_b32 s{sRET}, {i}')
        X(f's_branch L_renorm_{buf}')
    for buf in range(2):
        X(f'L_renorm_{buf}:')
        X('s_nop 15')
        renorm(X, buf, False)
        X('s_nop 3')
        mine = [(i, lab) for i, (lab, b) in enumerate(RARE.items()) if b == buf]
        for i, lab in mine[:-1]:
            X(f's_cmp_eq_u32 s{sRET}, {i}')
            X(f's_cbranch_scc1 L_back_{lab}')
        X(f's_branch L_back_{mine[-1][1]}')
    return P.finalize(), dict(name='k2_kernel', grid=256, block=256, lds=163840, vgpr=512, sgpr=102, accum=256)
```

```python
from k2e import *

def red_setup(S, name, ws_part, ptrs):
    S('s_cmp_ge_u32 s2, 256')
    S(f's_cbranch_scc1 L_{name}_end')
    for d, key in ptrs: S(f's_load_dwordx2 s[{d}:{d+1}], s[0:1], {KA[key]}')
    stamp(S, 0)
    S('v_lshrrev_b32 v9, 6, v0')
    S('v_and_b32 v1, 63, v0')
    S('v_readfirstlane_b32 s3, v9')
    S('v_and_b32 v2, 31, v0')
    S('v_bfe_u32 v3, v0, 5, 1')
    S('v_bfe_u32 v4, v0, 3, 2')
    S('v_and_b32 v5, 7, v0')
    S('v_mul_u32_u24 v9, 28672, v3')
    S('v_lshl_add_u32 v6, v2, 4, v9')
    S('v_lshl_add_u32 v7, v2, 3, v9')
    S('v_add_u32 v7, 1536, v7')
    S('s_mul_i32 s4, s2, 57344')
    S('s_mul_i32 s5, s3, 1792')
    S('s_add_u32 s4, s4, s5')
    S('s_waitcnt lgkmcnt(0)')

PR = 16
AC = 72
def red_load(S, srdp):
    for gi in range(4):
        S(f's_add_u32 s5, s4, {gi*7168}')
        b = PR + 14*gi
        for ip in range(3):
            S(f'buffer_load_dwordx4 {vr(b+4*ip)}, v6, s[{srdp}:{srdp+3}], s5 offen offset:{ip*512}')
        S(f'buffer_load_dwordx2 {vr(b+12,2)}, v7, s[{srdp}:{srdp+3}], s5 offen')
def red_sum(S):
    for d in range(14):
        S(f'v_lshlrev_b32 v{AC+2*d}, 16, v{PR+d}')
        S(f'v_and_b32 v{AC+2*d+1}, 0xffff0000, v{PR+d}')
    for gi in range(1, 4):
        for d in range(14):
            S(f'v_lshlrev_b32 v10, 16, v{PR+14*gi+d}')
            S(f'v_and_b32 v11, 0xffff0000, v{PR+14*gi+d}')
            S(f'v_pk_add_f32 {vr(AC+2*d,2)}, {vr(AC+2*d,2)}, v[10:11]')
    stamp(S, 1)
    for k in range(28):
        t = PR + k
        S(f'v_mov_b32 v{t}, v{AC+k}')
    for k in range(28):
        S(f'v_permlane32_swap_b32 v{AC+k}, v{PR+k}')
    for k in range(14):
        S(f'v_pk_add_f32 {vr(AC+2*k,2)}, {vr(AC+2*k,2)}, {vr(PR+2*k,2)}')

def row_reduce(S, x, t):
    S(f'v_add_f32_dpp v{x}, v{x}, v{x} row_ror:8 row_mask:0xf bank_mask:0xf')
    S(f'v_mov_b32 v{t}, v{x}')
    S(f'v_permlane16_swap_b32 v{x}, v{t}')
    S(f'v_add_f32 v{x}, v{x}, v{t}')

def layernorm28(S, X, ldsoff):
    a = 10
    S(f'v_pk_add_f32 v[10:11], {vr(X,2)}, {vr(X+2,2)}')
    for k in range(2, 14): S(f'v_pk_add_f32 v[10:11], v[10:11], {vr(X+2*k,2)}')
    S('v_add_f32 v10, v10, v11')
    row_reduce(S, 10, 11)
    S(f'v_mul_f32 v12, {f32(1.0/112)}, v10')
    S('v_sub_f32 v10, 0, v12'); S('v_sub_f32 v11, 0, v12')
    for k in range(14): S(f'v_pk_add_f32 {vr(X+2*k,2)}, {vr(X+2*k,2)}, v[10:11]')
    S(f'v_pk_mul_f32 v[10:11], {vr(X,2)}, {vr(X,2)}')
    for k in range(1, 14): S(f'v_pk_fma_f32 v[10:11], {vr(X+2*k,2)}, {vr(X+2*k,2)}, v[10:11]')
    S('v_add_f32 v13, v10, v11')
    row_reduce(S, 13, 11)
    S(f'ds_write_b64 v14, v[12:13] offset:{ldsoff}')
    S('s_waitcnt lgkmcnt(0)')
    S('s_barrier')
    S(f'ds_read_b128 {vr(PR)}, v15 offset:{ldsoff}')
    S(f'ds_read_b128 {vr(PR+4)}, v15 offset:{ldsoff+16}')
    m = [PR, PR+2, PR+4, PR+6]; q = [PR+1, PR+3, PR+5, PR+7]
    S(f'v_add_f32 v10, v{m[0]}, v{m[1]}'); S(f'v_add_f32 v11, v{m[2]}, v{m[3]}')
    S('v_add_f32 v10, v10, v11'); S('v_mul_f32 v10, 0.25, v10' if False else f'v_mul_f32 v10, {f32(0.25)}, v10')
    S(f'v_add_f32 v11, v{q[0]}, v{q[1]}'); S(f'v_add_f32 v11, v11, v{q[2]}'); S(f'v_add_f32 v11, v11, v{q[3]}')
    S(f'v_mov_b32 v13, {f32(1e-5)}')
    S(f'v_fmac_f32 v13, {f32(1.0/448)}, v11')
    for k in range(4):
        S(f'v_sub_f32 v{m[k]}, v{m[k]}, v10')
        S(f'v_mul_f32 v{m[k]}, v{m[k]}, v{m[k]}')
        S(f'v_fmac_f32 v13, {f32(0.25)}, v{m[k]}')
    S('v_rsq_f32 v13, v13')
    S('v_sub_f32 v10, v12, v10')
    S('v_mul_f32 v10, v10, v13'); S('v_mov_b32 v11, v10')
    S('v_mov_b32 v12, v13')
    for k in range(14): S(f'v_pk_fma_f32 {vr(X+2*k,2)}, {vr(X+2*k,2)}, v[12:13], v[10:11]')

def gen_k3():
    P = Prog('k3'); S = P.straight()
    red_setup(S, 'k3', WS_P1, [(36, 'x'), (38, 'ws')])
    srd(S, 8, 38, 256*57344, add=WS_P1); srd(S, 12, 36, SZ['x']); srd(S, 16, 38, 6*448*4, add=WS_MOD or None)
    srd(S, 20, 38, 2048*448*4, add=WS_X2); srd(S, 24, 38, 2048*448*2, add=WS_Y)
    red_load(S, 8)
    XR = 100; GA = 116; CB = 144; SB = 172
    S('s_mul_i32 s5, s2, 7168'); S('s_mul_i32 s6, s3, 224'); S('s_add_u32 s5, s5, s6')
    S('v_mul_u32_u24 v8, 896, v5'); S('v_lshl_add_u32 v8, v4, 3, v8')
    for i in range(7): S(f'buffer_load_dwordx2 {vr(XR+2*i,2)}, v8, s[12:15], s5 offen offset:{32*i}')
    S('v_lshlrev_b32 v9, 4, v4')
    S('s_mul_i32 s6, s3, 448')
    for arr, idx in ((GA, 2), (CB, 4), (SB, 3)):
        S(f's_add_u32 s7, s6, {idx*1792}')
        for i in range(7): S(f'buffer_load_dwordx4 {vr(arr+4*i)}, v9, s[16:19], s7 offen offset:{64*i}')
    S('v_lshlrev_b32 v15, 5, v5')
    S('s_lshl_b32 s5, s3, 3')
    S('v_add_u32 v14, s5, v15')
    red_sum(S)
    for d in range(14):
        S(f'v_lshlrev_b32 v10, 16, v{XR+d}')
        S(f'v_and_b32 v11, 0xffff0000, v{XR+d}')
        S(f'v_pk_fma_f32 {vr(AC+2*d,2)}, {vr(AC+2*d,2)}, {vr(GA+2*d,2)}, v[10:11]')
    S('s_mul_i32 s5, s2, 14336'); S('s_mul_i32 s6, s3, 3584'); S('s_add_u32 s5, s5, s6')
    S('v_lshlrev_b32 v8, 4, v2')
    S('s_mov_b32 exec_hi, 0')
    for i in range(7): S(f'buffer_store_dwordx4 {vr(AC+4*i)}, v8, s[20:23], s5 offen offset:{512*i}')
    S('s_mov_b64 exec, -1')
    Y = 200
    for k in range(28): S(f'v_mov_b32 v{Y+k}, v{AC+k}')
    layernorm28(S, Y, 0)
    for k in range(14): S(f'v_pk_fma_f32 {vr(Y+2*k,2)}, {vr(Y+2*k,2)}, {vr(CB+2*k,2)}, {vr(SB+2*k,2)}')
    layernorm28(S, Y, 256)
    for k in range(14): S(f'v_cvt_pk_bf16_f32 v{XR+k}, v{Y+2*k}, v{Y+2*k+1}')
    S('s_lshr_b32 s5, s2, 3'); S('s_mul_i32 s5, s5, 57344')
    S('s_bfe_u32 s6, s2, 0x20001'); S('s_lshl_b32 s6, s6, 10'); S('s_add_u32 s5, s5, s6')
    S('s_and_b32 s6, s2, 1'); S('s_lshl_b32 s6, s6, 7'); S('s_add_u32 s5, s5, s6')
    S('v_lshlrev_b32 v8, 4, v5'); S('v_lshl_add_u32 v8, v4, 8, v8')
    S('s_mul_i32 s6, s3, 12288'); S('s_add_u32 s6, s6, s5')
    S('s_lshr_b32 s7, s3, 1'); S('s_lshl_b32 s7, s7, 12'); S('s_add_u32 s7, s7, s5'); S(f's_add_u32 s7, s7, {12*4096}')
    S('s_and_b32 s28, s3, 1'); S('s_lshl_b32 s28, s28, 3'); S('s_add_u32 s7, s7, s28')
    S('s_mov_b32 exec_hi, 0')
    for ip in range(3):
        S(f'buffer_store_dwordx4 {vr(XR+4*ip)}, v8, s[24:27], s6 offen')
        if ip < 2: S('s_add_u32 s6, s6, 4096')
    S(f'buffer_store_dwordx2 {vr(XR+12,2)}, v8, s[24:27], s7 offen')
    S('s_waitcnt vmcnt(0)') if STAMPS['on'] else None
    stamp(S, 2)
    stamp_flush(S, 3, 2, 3, 38)
    S('L_k3_end:')
    S('s_endpgm')
    return P.finalize(), dict(name='k3_kernel', grid=256, block=256, lds=1024, vgpr=232, sgpr=102, accum=232)

def gen_k5():
    P = Prog('k5'); S = P.straight()
    red_setup(S, 'k5', WS_P2, [(36, 'b2'), (38, 'ws'), (40, 'out')])
    srd(S, 8, 38, 256*57344, add=WS_P2); srd(S, 12, 36, SZ['b2']); srd(S, 16, 38, 6*448*4, add=WS_MOD or None)
    srd(S, 20, 38, 2048*448*4, add=WS_X2); srd(S, 24, 40, SZ['out'])
    red_load(S, 8)
    BR = 100; GB = 116; X2 = 144
    S('s_mul_i32 s6, s3, 224')
    S('v_lshlrev_b32 v8, 3, v4')
    for i in range(7): S(f'buffer_load_dwordx2 {vr(BR+2*i,2)}, v8, s[12:15], s6 offen offset:{32*i}')
    S('v_lshlrev_b32 v9, 4, v4')
    S('s_mul_i32 s7, s3, 448'); S(f's_add_u32 s7, s7, {5*1792}')
    for i in range(7): S(f'buffer_load_dwordx4 {vr(GB+4*i)}, v9, s[16:19], s7 offen offset:{64*i}')
    S('s_mul_i32 s5, s2, 14336'); S('s_mul_i32 s7, s3, 3584'); S('s_add_u32 s5, s5, s7')
    S('v_lshlrev_b32 v12, 4, v2')
    for i in range(7): S(f'buffer_load_dwordx4 {vr(X2+4*i)}, v12, s[20:23], s5 offen offset:{512*i}')
    red_sum(S)
    for d in range(14):
        S(f'v_lshlrev_b32 v10, 16, v{BR+d}')
        S(f'v_and_b32 v11, 0xffff0000, v{BR+d}')
        S(f'v_pk_add_f32 {vr(AC+2*d,2)}, {vr(AC+2*d,2)}, v[10:11]')
        S(f'v_pk_fma_f32 {vr(AC+2*d,2)}, {vr(AC+2*d,2)}, {vr(GB+2*d,2)}, {vr(X2+2*d,2)}')
        S(f'v_cvt_pk_bf16_f32 v{PR+d}, v{AC+2*d}, v{AC+2*d+1}')
    S('s_mul_i32 s5, s2, 7168'); S('s_add_u32 s5, s5, s6')
    S('v_mul_u32_u24 v8, 896, v5'); S('v_lshl_add_u32 v8, v4, 3, v8')
    S('s_mov_b32 exec_hi, 0')
    for i in range(7): S(f'buffer_store_dwordx2 {vr(PR+2*i,2)}, v8, s[24:27], s5 offen offset:{32*i}')
    S('s_waitcnt vmcnt(0)') if STAMPS['on'] else None
    stamp(S, 2)
    stamp_flush(S, 3, 4, 3, 38)
    S('L_k5_end:')
    S('s_endpgm')
    return P.finalize(), dict(name='k5_kernel', grid=256, block=256, lds=0, vgpr=176, sgpr=102, accum=176)

def k4_map(S):
    if OPT.get('k4map', 2) == 1:
        S(f's_and_b32 s{sG}, s2, 7'); S(f's_lshr_b32 s{sRB}, s2, 3')
    else:
        S(f's_and_b32 s{sG}, s2, 3'); S(f's_lshl_b32 s{sG}, s{sG}, 1')
        S(f's_bfe_u32 s{sRB}, s2, 0x10003'); S(f's_or_b32 s{sG}, s{sG}, s{sRB}')
        S(f's_bfe_u32 s{sRB}, s2, 0x10002'); S(f's_lshl_b32 s{sRB}, s{sRB}, 4')
        S(f's_lshr_b32 s{sT0}, s2, 4'); S(f's_or_b32 s{sRB}, s{sRB}, s{sT0}')

def gen_k4():
    P = Prog('k4'); S = P.straight()
    SY, SW1, SW2, SB1, SP2 = 8, 12, 16, 20, 24
    S('s_cmp_ge_u32 s2, 256')
    S('s_cbranch_scc1 L_k4_end')
    S(f's_load_dwordx4 s[56:59], s[0:1], {KA["w1"]}')
    S(f's_load_dwordx2 s[60:61], s[0:1], {KA["w2"]}')
    S(f's_load_dwordx2 s[62:63], s[0:1], {KA["ws"]}')
    stamp(S, 0)
    k4_map(S)
    LN_, I16, KG = 96, 97, 98
    WV = 100; LT = 107; VO = 108; VO2 = 109; L16 = [110, 111, 112]; RV = [113, 114, 115, 125]
    t0, t1, t2, t3 = 116, 117, 118, 119
    D1 = 120; LA = [121, 122, 123, 124]
    sPB, sG1 = 40, 41
    S(f'v_lshrrev_b32 v{t0}, 6, v0')
    S(f'v_and_b32 v{LN_}, 63, v0')
    S(f'v_readfirstlane_b32 s{sW}, v{t0}')
    S(f'v_and_b32 v{I16}, 15, v0')
    S(f'v_bfe_u32 v{KG}, v0, 4, 2')
    S(f'v_lshlrev_b32 v{L16[0]}, 4, v{LN_}')
    S(f'v_lshrrev_b32 v{t0}, 3, v{LN_}'); S(f'v_and_b32 v{t1}, 7, v{LN_}')
    S(f'v_and_b32 v{t2}, 6, v{t0}'); S(f'v_xor_b32 v{t2}, v{t2}, v{t1}')
    S(f'v_mul_u32_u24 v{D1}, 3584, v{t0}')
    S(f'v_lshl_add_u32 v{D1}, v{t2}, 4, v{D1}')
    S(f's_lshl_b32 s{sT0}, s{sW}, 7')
    S(f'v_add_u32 v{D1}, s{sT0}, v{D1}')
    S(f's_lshl_b32 s{sPB}, s{sW}, 15'); S(f's_add_u32 s{sPB}, s{sPB}, 32768')
    S(f's_mul_i32 s{sG1}, s{sG}, 448')
    S(f's_andn2_b32 s{sG1}, s{sG1}, 127')
    S(f's_add_u32 s{sT0}, s{sT0}, s{sG1}')
    S(f'v_lshlrev_b32 v{t0}, 3, v{KG}')
    sYG, sYL = 47, 48
    S(f's_lshl_b32 s{sYL}, s{sW}, 10')
    S(f's_mul_i32 s{sYG}, s{sRB}, 57344'); S(f's_add_u32 s{sYG}, s{sYG}, s{sYL}')
    S('s_waitcnt lgkmcnt(0)')
    srd(S, SY, 62, 2048*448*2, add=WS_Y)
    def y_dma(lo, hi, tag):
        for k in range(lo, hi):
            S(f's_add_u32 m0, s{sYL}, {k*4096}' if k < 8 else f's_add_u32 m0, s{sPB}, {26624 + (k-8)*1024}')
            S(f's_add_u32 s{sT2}, s{sYG}, {k*4096}')
            S(f'buffer_load_dwordx4 v{L16[0]}, s[{SY}:{SY+3}], s{sT2} offen lds', tag=tag)
    def yaddr(k, qb):
        a = (k*4+qb)*1024 if k < 8 else 32768*(qb+1) + 26624 + (k-8)*1024
        return L16[a // 65536], a % 65536
    def rowbase(k, rg):
        if k < 12: return 112*(k // 3) + 32*(k % 3) + 8*rg
        u = k - 12
        return 224*u + 96 + 8*rg if rg < 2 else 224*u + 208 + 8*(rg - 2)
    def w1_dma(k):
        out = []
        for rg in range(4):
            pre = [f's_add_u32 m0, s{sPB}, {((k+4) % 6)*4096 + rg*1024}', f's_add_u32 s{sT2}, s{sG1}, {rowbase(k, rg)*3584}']
            out.append(dict(pre=pre, t=[f'buffer_load_dwordx4 v{D1}, s[{SW1}:{SW1+3}], s{sT2} offen lds'], post=[], tag=f'w1{k}'))
        return out
    y_dma(0, 4, 'ya')
    srd(S, SB1, 58, SZ['b1'])
    for jj in range(4): S(f'buffer_load_dwordx2 {vr(2+2*jj,2)}, v{t0}, s[{SB1}:{SB1+3}], s{sT0} offen offset:{32*jj}')
    srd(S, SW1, 56, SZ['w1'])
    NPRE = OPT.get('k4pre', 4)
    for k in range(NPRE): emit_groups(S, w1_dma(k))
    y_dma(4, 9, 'yb')
    y_dma(9, 14, 'yc')
    srd(S, SW2, 60, SZ['w2']); srd(S, SP2, 62, 256*57344, add=WS_P2)
    BI = 80
    S(f'v_and_b32 v{t0}, 1, v{KG}'); S(f'v_lshlrev_b32 v{t0}, 2, v{t0}')
    S(f'v_lshrrev_b32 v{t1}, 2, v{I16}'); S(f'v_add_u32 v{t0}, v{t0}, v{t1}')
    S(f'v_lshrrev_b32 v{t1}, 1, v{t0}')
    S(f'v_and_b32 v{t2}, 3, v{I16}'); S(f'v_lshlrev_b32 v{t2}, 3, v{t2}')
    S(f'v_lshl_add_u32 v{t2}, v{t0}, 7, v{t2}')
    S(f'v_lshrrev_b32 v{t3}, 1, v{KG}'); S(f'v_lshl_add_u32 v{t2}, v{t3}, 10, v{t2}')
    S(f'v_add_u32 v{t2}, s{sPB}, v{t2}')
    for jj in range(4):
        S(f'v_xor_b32 v{t3}, {jj}, v{t1}')
        S(f'v_lshl_add_u32 v{LA[jj]}, v{t3}, 5, v{t2}')
    S(f'v_add_u32 v{L16[1]}, 65536, v{L16[0]}'); S(f'v_add_u32 v{L16[2]}, 131072, v{L16[0]}')
    proj_lane_setup(S, LN_, I16, KG, WV, LT, VO, VO2, 896, t0, t1)
    sR = [42, 43, 44, 49]; sWB, sOUT = 45, 46
    for k in range(4): S(f's_add_u32 s{sR[k]}, s{sPB}, {k*7168}')
    for k in range(4): S(f'v_add_u32 v{RV[k]}, s{sR[k]}, v{LT}')
    S(f's_mul_i32 s{sWB}, s{sG}, {224*896}')
    S(f's_mul_i32 s{sOUT}, s{sRB}, {8*57344}')
    S(f's_mul_i32 s{sT1}, s{sG}, 7168'); S(f's_add_u32 s{sOUT}, s{sOUT}, s{sT1}')
    S(f's_mul_i32 s{sT1}, s{sW}, 1792'); S(f's_add_u32 s{sOUT}, s{sOUT}, s{sT1}')
    for jj in range(4):
        S(f'v_lshlrev_b32 v{BI+4*jj}, 16, v{2+2*jj}'); S(f'v_and_b32 v{BI+4*jj+1}, 0xffff0000, v{2+2*jj}')
        S(f'v_lshlrev_b32 v{BI+4*jj+2}, 16, v{3+2*jj}'); S(f'v_and_b32 v{BI+4*jj+3}, 0xffff0000, v{3+2*jj}')
    S.waittag('ya')
    S('s_barrier')
    stamp(S, 1)
    ACC = 128; BF = 192; AF = 48
    def afr(n): return AF + 4*(n % 8)
    def bfr(k, qb): return BF + ((k % 3)*4 + qb)*4
    def a_reads(n):
        k, jj = n // 4, n % 4
        out = []
        if jj == 0: out.append(dict(waittag=f'w1{k}'))
        o = ((k+4) % 6)*4096
        out.append(dict(t=f'ds_read_b64_tr_b16 {vr(afr(n),2)}, v{LA[jj]} offset:{o}'))
        out.append(dict(t=f'ds_read_b64_tr_b16 {vr(afr(n)+2,2)}, v{LA[jj]} offset:{o+2048}'))
        return out
    def b_read(k, qb):
        a, o = yaddr(k, qb)
        return f'ds_read_b128 {vr(bfr(k,qb))}, v{a} offset:{o}'
    AH = 6
    for qb in range(4): S(b_read(0, qb))
    for n in range(AH):
        for f in a_reads(n):
            if 'waittag' in f: S.waittag(f['waittag'])
            else: S(f['t'])
    for qb in range(4): S(b_read(1, qb))
    def w2_dma(k):
        out = []
        for n in range(7):
            pre = [f's_add_u32 m0, s{sR[k]}, {n*1024}']
            if n == 0: pre.append(f's_add_u32 s{sT2}, s{sWB}, {k*32*896}')
            out.append(dict(pre=pre, t=[f'buffer_load_dwordx4 v{WV+n}, s[{SW2}:{SW2+3}], s{sT2} offen lds'], post=[], tag=f'w2{k}'))
        return out
    m = []; F = []
    for n in range(56):
        k, jj = n // 4, n % 4
        for qb in range(4):
            acc = vr(ACC + (jj*4+qb)*4)
            m.append(f'{MF} {acc}, {vr(afr(n))}, {vr(bfr(k,qb))}, {acc if k else vr(BI+4*jj)}')
        if n + AH < 56:
            for f in a_reads(n + AH):
                f.update(lo=n*4, c=1, chain='rd'); F.append(f)
        if k + 2 < 14:
            if jj == 0 and k + 2 in (4, 9):
                F.append(dict(waittag='yb' if k + 2 == 4 else 'yc', lo=n*4+1, c=1, chain='rd'))
                F.append(dict(t='s_barrier', lo=n*4+1, c=1, chain='rd'))
                if STAMPS['on']:
                    ix = 6 if k + 2 == 4 else 8
                    F.insert(len(F)-2, dict(t=f's_memrealtime s[{ST0+2*ix}:{ST0+2*ix+1}]', lo=n*4+1, c=0, chain='rd'))
                    F.append(dict(t=f's_memrealtime s[{ST0+2*ix+2}:{ST0+2*ix+3}]', lo=n*4+1, c=0, chain='rd'))
            F.append(dict(t=b_read(k+2, jj), lo=n*4 + 2, c=1, chain='rd'))
    for k in range(NPRE - 6, 8):
        for i, gr in enumerate(w1_dma(k + 6)):
            g = max((k + 1)*16 + 4*i + 2, 2*((k + 6 - NPRE)*4 + i) + 1)
            F.append(dict(t=gr['pre'], lo=g-1, c=1, chain='dma'))
            F.append(dict(t=gr['t'], lo=g, c=2, tag=gr['tag'], chain='dma'))
    for kk, after in (((0, 9), (1, 11)) if OPT.get('k4w2early') else ((0, 11),)):
        for i, gr in enumerate(w2_dma(kk)):
            g = (after + 1)*16 + 4*i + 2
            F.append(dict(t=gr['pre'], lo=g-1, c=1, chain='dma'))
            F.append(dict(t=gr['t'], lo=g, c=2, tag=gr['tag'], chain='dma'))
    F.sort(key=lambda f: f['lo'])
    interleave(S, m, F, cap=3)
    S('s_barrier')
    stamp(S, 2)
    K0 = -2.0 * 0.7978845608028654 * 1.4426950408889634
    K1 = K0 * 0.044715
    G = Seq()
    G(f'v_mov_b32 v2, {f32(K1)}'); G(f'v_mov_b32 v3, {f32(K1)}'); G(f'v_mov_b32 v4, {f32(K0)}'); G(f'v_mov_b32 v5, {f32(K0)}')
    G('v_mov_b32 v6, 1.0'); G('v_mov_b32 v7, 1.0')
    G(f's_lshl_b32 s{sT1}, s{sW}, 13')
    G(f'v_add_u32 v{t2}, s{sT1}, v{L16[0]}')
    G(f's_and_b32 s{sT1}, s{sG}, 1'); G(f's_lshl_b32 s{sT1}, s{sT1}, 12')
    G(f'v_add_u32 v{t3}, s{sT1}, v{L16[0]}')
    n = 0
    for u in range(2):
        for qb in range(4):
            T = 16 + 16*(n % 4); n += 1
            src = [ACC + ((2*u + e // 2)*4 + qb)*4 + 2*(e % 2) for e in range(4)]
            for e in range(4): G(f'v_pk_mul_f32 {vr(T+2*e,2)}, {vr(src[e],2)}, {vr(src[e],2)}')
            for e in range(4): G(f'v_pk_fma_f32 {vr(T+2*e,2)}, {vr(T+2*e,2)}, v[2:3], v[4:5]')
            for e in range(4): G(f'v_pk_mul_f32 {vr(T+2*e,2)}, {vr(T+2*e,2)}, {vr(src[e],2)}')
            for e in range(8): G(f'v_exp_f32 v{T+e}, v{T+e}')
            for e in range(4): G(f'v_pk_add_f32 {vr(T+2*e,2)}, {vr(T+2*e,2)}, v[6:7]')
            for e in range(8): G(f'v_rcp_f32 v{T+e}, v{T+e}')
            for e in range(4): G(f'v_pk_mul_f32 {vr(T+2*e,2)}, {vr(T+2*e,2)}, {vr(src[e],2)}')
            for e in range(4): G(f'v_cvt_pk_bf16_f32 v{T+8+e}, v{T+2*e}, v{T+2*e+1}')
            G(f'ds_write_b128 v{t2}, {vr(T+8)} offset:{(u*4+qb)*1024}')
    merge_into(S, G, ([] if OPT.get('k4w2early') else w2_dma(1)) + w2_dma(2) + w2_dma(3), every=10, start=4)
    S('s_waitcnt lgkmcnt(0)')
    S('s_barrier')
    stamp(S, 3)
    proj_out(S, 7, lambda k, qb: (t3, (k*4+qb)*1024), SW2, sWB, 896, sR, RV, WV, 128, SP2, sOUT, VO, VO2, 4, 'w2', stamp_idx=4)
    if STAMPS['on']: S('s_waitcnt vmcnt(0)')
    stamp(S, 5)
    stamp_flush(S, 10, 3, sW, 62)
    S('L_k4_end:')
    S('s_endpgm')
    return P.finalize(), dict(name='k4_kernel', grid=256, block=256, lds=163840, vgpr=256, sgpr=102, accum=256)

def gen_all():
    return [gen_k3(), gen_k4(), gen_k5()]
```

```python
from common import *

def gen_k1():
    P = Prog('k1'); S = P.straight()
    S('s_cmp_ge_u32 s2, 256')
    S('s_cbranch_scc1 L_k1_end')
    S(f's_load_dwordx4 s[4:7], s[0:1], {KA["c"]}')
    S(f's_load_dwordx2 s[8:9], s[0:1], {KA["ws"]}')
    S(f's_load_dwordx8 s[32:39], s[0:1], 0')
    stamp(S, 0)
    S('v_and_b32 v1, 3, v0')
    S('v_lshrrev_b32 v2, 2, v0')
    S('s_waitcnt lgkmcnt(0)')
    srd(S, 12, 4, SZ['c']); srd(S, 16, 6, SZ['wmod']); srd(S, 20, 8, 16384, add=WS_MOD or None)
    S('s_cmp_ge_u32 s2, 84')
    S('s_cbranch_scc1 L_k1_warm')
    S('v_lshlrev_b32 v3, 1, v2')
    S('v_mul_u32_u24 v4, 5376, v2')
    S('v_lshl_add_u32 v4, v1, 4, v4')
    S('s_lshl_b32 s3, s2, 6')
    for k in range(7):
        S(f'buffer_load_ushort v{8+k}, v3, s[12:15], 0 offen offset:{128*k}')
    for k in range(7):
        S(f's_add_u32 s24, s3, {k*64*5376}')
        S(f'buffer_load_dwordx4 v[{16+4*k}:{19+4*k}], v4, s[16:19], s24 offen')
    S('L_k1_warm:')
    if STAMPS['on']:
        srd(S, 76, 8, 1 << 20, add=WS_DBG + (32 << 20))
        S('s_lshl_b32 s75, s2, 8'); S(f'v_mov_b32 v68, s{ST0}'); S('v_mov_b32 v69, 0')
        S('buffer_store_dword v68, v69, s[76:79], s75 offen')
    if OPT.get('diag'):
        srd(S, 40, 8, 1 << 20, add=WS_DBG)
        S('s_getreg_b32 s56, hwreg(HW_REG_XCC_ID)')
        S('s_and_b32 s56, s56, 7')
        S('v_mov_b32 v56, s56'); S('s_lshl_b32 s57, s2, 2'); S('v_mov_b32 v57, s57')
        S('buffer_store_dword v56, v57, s[40:43], 0 offen')
    srd(S, 40, 32, SZ['x']); srd(S, 44, 34, SZ['k']); srd(S, 48, 36, SZ['v']); srd(S, 52, 38, SZ['wq'])
    S('s_and_b32 s56, s2, 7'); S('s_lshr_b32 s57, s2, 3')
    S('v_lshlrev_b32 v56, 6, v0')
    S('v_lshrrev_b32 v57, 4, v0'); S('v_lshlrev_b32 v57, 13, v57')
    S('v_and_b32 v58, 15, v0'); S('v_lshl_add_u32 v57, v58, 6, v57')
    S(f's_mul_i32 s58, s57, {14*8192}'); S('s_lshl_b32 s59, s56, 10'); S('s_add_u32 s58, s58, s59')
    S('v_cmp_gt_u32 vcc, 224, v0'); S('v_mov_b32 v58, 0x7fffffff'); S('v_cndmask_b32 v57, v58, v57, vcc')
    S('buffer_load_dword v59, v57, s[52:55], s58 offen')
    S('s_mul_i32 s58, s57, 57344')
    for k in range(4):
        if k == 3:
            S('v_cmp_gt_u32 vcc, 128, v0'); S('v_cndmask_b32 v56, v58, v56, vcc')
        if OPT.get('xwarm'): S(f'buffer_load_dword v{60+k}, v56, s[40:43], s58 offen')
        S('s_add_u32 s58, s58, 16384')
    S('s_lshl_b32 s58, s56, 20'); S('s_lshl_b32 s59, s57, 13'); S('s_add_u32 s58, s58, s59')
    S('buffer_load_dword v64, v56, s[44:47], s58 offen')
    S('buffer_load_dword v65, v56, s[48:51], s58 offen')
    srd(S, 40, 8, 3*4096, add=WS_FL)
    S('v_lshlrev_b32 v67, 2, v0'); S('v_cmp_gt_u32 vcc, 12, v0'); S('v_cndmask_b32 v67, v58, v67, vcc')
    S('s_mul_i32 s59, s2, 48'); S('v_mov_b32 v70, 0')
    S('buffer_store_dword v70, v67, s[40:43], s59 offen')
    S('s_getpc_b64 s[60:61]')
    S('L_k1_pc:')
    S('s_sub_u32 s60, s60, L_k1_pc-k1_kernel'); S('s_subb_u32 s61, s61, 0')
    S('s_mov_b32 s62, L_code_end-k1_kernel'); S('s_mov_b32 s63, 0x00020000')
    S('v_cmp_gt_u32 vcc, 64, v0'); S('v_cndmask_b32 v56, v58, v56, vcc')
    S('s_lshl_b32 s59, s57, 12')
    S('buffer_load_dword v66, v56, s[60:63], s59 offen')
    S('s_cmp_ge_u32 s2, 84')
    S('s_cbranch_scc1 L_k1_end')
    for j in range(8): S(f'v_mov_b32 v{48+j}, 0')
    for k in range(7):
        c = 8 + k
        S(f'v_lshlrev_b32 v{c}, 16, v{c}')
        S(f'v_mul_f32 v5, 0xbfb8aa3b, v{c}')
        S('v_exp_f32 v5, v5')
        S('v_add_f32 v5, 1.0, v5')
        S('v_rcp_f32 v5, v5')
        S(f'v_mul_f32 v5, v5, v{c}')
        S('v_cvt_pk_bf16_f32 v5, v5, v5')
        S(f'v_lshlrev_b32 v{c}, 16, v5')
    for k in range(7):
        for j in range(4):
            w = 16 + 4*k + j
            S(f'v_lshlrev_b32 v6, 16, v{w}')
            S(f'v_and_b32 v7, 0xffff0000, v{w}')
            S(f'v_fmac_f32 v{48+2*j}, v6, v{8+k}')
            S(f'v_fmac_f32 v{49+2*j}, v7, v{8+k}')
    S('v_mul_u32_u24 v5, 144, v2')
    S('v_lshl_add_u32 v5, v1, 5, v5')
    S('ds_write_b128 v5, v[48:51]')
    S('ds_write_b128 v5, v[52:55] offset:16')
    S('v_and_b32 v6, 31, v0')
    S('v_lshrrev_b32 v7, 5, v0')
    S('v_mul_u32_u24 v8, 1152, v7')
    S('v_lshl_add_u32 v8, v6, 2, v8')
    S('s_waitcnt lgkmcnt(0)')
    S('s_barrier')
    for k in range(8): S(f'ds_read_b32 v{16+k}, v8 offset:{144*k}')
    for k in range(1, 8): S(f'v_add_f32 v16, v16, v{16+k}')
    S('v_lshlrev_b32 v9, 2, v0')
    S('ds_write_b32 v9, v16 offset:9216')
    S('v_lshlrev_b32 v10, 2, v6')
    S('s_waitcnt lgkmcnt(0)')
    S('s_barrier')
    for k in range(8): S(f'ds_read_b32 v{24+k}, v10 offset:{9216+128*k}')
    for k in range(1, 8): S(f'v_add_f32 v24, v24, v{24+k}')
    S('v_cvt_pk_bf16_f32 v24, v24, v24')
    S('v_lshlrev_b32 v24, 16, v24')
    S('v_add_f32 v25, 1.0, v24')
    S('v_cvt_pk_bf16_f32 v25, v25, v25')
    S('v_lshlrev_b32 v25, 16, v25')
    S('s_sub_u32 s25, s2, 14')
    S('s_cmp_lt_u32 s25, 14')
    S('s_cselect_b32 s26, 1, 0')
    S('s_sub_u32 s25, s2, 56')
    S('s_cmp_lt_u32 s25, 14')
    S('s_cselect_b32 s26, 1, s26')
    S('s_cmp_eq_u32 s26, 1')
    S('s_cselect_b64 vcc, -1, 0')
    S('v_cndmask_b32 v24, v24, v25, vcc')
    S('s_lshl_b32 s27, s2, 7')
    S('v_cmp_gt_u32 vcc, 32, v0')
    S('s_and_saveexec_b64 s[28:29], vcc')
    S('s_cbranch_execz L_k1_end')
    S('buffer_store_dword v24, v10, s[20:23], s27 offen')
    S('v_mul_f32 v25, 0x3db8aa3b, v24')
    S('s_cmp_ge_u32 s2, 28')
    S('s_cbranch_scc1 L_k1_end')
    S(f's_add_u32 s27, s27, {WS_MODQ - WS_MOD}')
    S('buffer_store_dword v25, v10, s[20:23], s27 offen')
    S('L_k1_end:')
    S('s_endpgm')
    return P.finalize(), dict(name='k1_kernel', grid=256, block=256, lds=10240, vgpr=72, sgpr=102, accum=72)
```

```python
from common import *
import struct
def f32(x): return '0x%08x' % struct.unpack('<I', struct.pack('<f', x))[0]

SLOT = 32768
sG, sRB, sW, sP, sS = 3, 4, 5, 6, 7
SX, SK, SV, SWQ, SWO, SMOD, SP1 = 8, 12, 16, 20, 24, 28, 32
sT0, sT1, sT2, sT3 = 36, 37, 38, 39
sSL = [40, 41, 42, 43, 44]
sKT, sKT2, sVT, sVT2 = 45, 46, 47, 48
sDK, sDV = 49, 50
sCNT, sTHR, sW4K, sRET, sQG = 51, 52, 53, 54, 55
sPTR = 56
SDBG = 28

KA_ = [0, 1]; VA_ = [2, 3, 4, 5]; DK, DV = 6, 7
L_ = 8; PS = 12; S_ = 16; P_ = 48; NM = 80; FR = 96; TMP = 120; NT = 6; WA, WD = 126, 127; Q_ = 128
SWM, sWO, sWI = 76, 74, 75
def Sr(kb, qb): return S_ + (kb*4+qb)*4
def Pr(b, qb): return P_ + (b*4+qb)*4
def Qr(qb, st): return Q_ + (qb*8+st)*4
def Or(j, qb): return (j*4+qb)*4
def vr(b, n=4): return f'v[{b}:{b+n-1}]'
def ar(b, n=4): return f'a[{b}:{b+n-1}]'
MF = 'v_mfma_f32_16x16x32_bf16'

RING = [4,5,0,1, 3,4,5,0, 2,3,4,5, 1,2,3,4] + [k % 6 for k in range(16)]
AHEAD = 4
def FRr(f): return FR + 4*RING[f % 32]

def allreduce_kg_ops(x, t, op):
    return [f'v_mov_b32 v{t}, v{x}', f'v_permlane16_swap_b32 v{x}, v{t}', f'{op} v{x}, v{x}, v{t}',
            f'v_mov_b32 v{t}, v{x}', f'v_permlane32_swap_b32 v{x}, v{t}', f'{op} v{x}, v{x}, v{t}']
def allreduce_kg(S, x, t, op):
    for l in allreduce_kg_ops(x, t, op): S(l)

def k_read(f):
    kb, st = f // 8, f % 8
    return [f'ds_read_b128 {vr(FRr(f))}, v{KA_[st & 1]} offset:{kb*8192 + (st >> 1)*1024}']
def v_read(f, jmap=None):
    j = f - 16
    if jmap: j = jmap[j]
    cg, jj = j >> 2, j & 3
    b = FRr(f)
    return [f'ds_read_b64_tr_b16 {vr(b,2)}, v{VA_[jj]} offset:{cg*1024}',
            f'ds_read_b64_tr_b16 {vr(b+2,2)}, v{VA_[jj]} offset:{8192 + cg*1024}']

def dma_kv(which, slot_s, n):
    u, cg = n >> 2, n & 3
    if which == 'K':
        gcg = cg; srd_, vo, so = SK, DK, (sKT, sKT2)[u]
    else:
        gcg = cg ^ (2 * u); srd_, vo, so = SV, DV, (sVT, sVT2)[u]
    return [f's_add_u32 m0, s{slot_s}, {u*16384 + cg*1024 - gcg*128}',
            f'buffer_load_dwordx4 v{vo}, s[{srd_}:{srd_+3}], s{so} offen offset:{gcg*128} lds']

def kv_groups(which, slot_s):
    out = []
    for n in range(8):
        pre, t = dma_kv(which, slot_s, n)
        out.append(dict(pre=[pre], t=[t], post=[], tag=which))
    a, b = (sKT, sKT2) if which == 'K' else (sVT, sVT2)
    out[3]['post'] = [f's_add_u32 s{a}, s{a}, 32768']
    out[7]['post'] = [f's_add_u32 s{b}, s{b}, 32768']
    return out

def emit_groups(S, groups):
    for gr in groups:
        for t in gr['pre']: S(t)
        for t in gr['t']: S(t, tag=gr['tag'])
        for t in gr.get('post', []): S(t)

def mfma_A(first_c=None):
    out = []
    for kb in range(2):
        for st in range(8):
            f = kb*8 + st
            for qb in range(4):
                c = vr(Sr(kb, qb)) if st else (first_c if first_c is not None else vr(NM + 4*qb))
                out.append(f'{MF} {vr(Sr(kb,qb))}, {vr(FRr(f))}, {vr(Qr(qb,st))}, {c}')
    return out
def mfma_B(buf, zero=False, jmap=None):
    out = []
    for n, qb in B_ORDER():
        j = jmap[n] if jmap else n
        out.append(f'{MF} {ar(Or(j,qb))}, {vr(FRr(16+n))}, {vr(Pr(buf,qb))}, {"0" if zero else ar(Or(j,qb))}')
    return out
def B_ORDER():
    if OPT.get('b2', 1):
        return [(2*p + [1,0,0,1,1,0,0,1][i], i // 2) for p in range(8) for i in range(8)]
    return [(n, qb) for n in range(16) for qb in range(4)]

def softmax_linear(buf, kb, qb, tbase):
    s = Sr(kb, qb); t = [TMP + ((tbase + r) % NT) for r in range(4)]
    o = [f'v_exp_f32 v{t[r]}, v{s+r}' for r in range(4)]
    if kb == 0: o.append(f'v_add_f32 v{PS+qb}, v{t[0]}, v{t[1]}')
    else: o += [f'v_add_f32 v{PS+qb}, v{PS+qb}, v{t[0]}', f'v_add_f32 v{PS+qb}, v{PS+qb}, v{t[1]}']
    o.append(f'v_cvt_pk_bf16_f32 v{Pr(buf,qb)+2*kb}, v{t[0]}, v{t[1]}')
    o.append(f'v_add_f32 v{PS+qb}, v{PS+qb}, v{t[2]}')
    o.append(f'v_cvt_pk_bf16_f32 v{Pr(buf,qb)+2*kb+1}, v{t[2]}, v{t[3]}')
    o.append(f'v_add_f32 v{PS+qb}, v{PS+qb}, v{t[3]}')
    return o

def softmax_sched(buf):
    ops = []
    readers = {}
    lastps = {}
    e = 0
    prev_exp = None
    for kb in range(2):
        for qb in range(4):
            lo = kb*32 + 28 + qb + 5
            s = Sr(kb, qb)
            ex = []
            for r in range(4):
                t = TMP + (e % NT); e += 1
                o = Op(f'v_exp_f32 v{t}, v{s+r}', c=2, lo=lo, deps=readers.get(t, []) + ([prev_exp] if prev_exp else []), pri=1)
                o.reg = t; readers[t] = []
                ops.append(o); ex.append(o); prev_exp = o
            def light(txt, srcs, chain=None):
                d = list(srcs) + ([lastps[chain]] if chain is not None and chain in lastps else [])
                o = Op(txt, c=1, lo=lo, deps=d, pri=2, dist=1)
                for x in srcs: readers[x.reg].append(o)
                if chain is not None: lastps[chain] = o
                ops.append(o); return o
            ps = PS + qb
            if kb == 0: light(f'v_add_f32 v{ps}, v{ex[0].reg}, v{ex[1].reg}', ex[:2], qb)
            else:
                light(f'v_add_f32 v{ps}, v{ps}, v{ex[0].reg}', ex[:1], qb)
                light(f'v_add_f32 v{ps}, v{ps}, v{ex[1].reg}', ex[1:2], qb)
            light(f'v_cvt_pk_bf16_f32 v{Pr(buf,qb)+2*kb}, v{ex[0].reg}, v{ex[1].reg}', ex[:2])
            light(f'v_add_f32 v{ps}, v{ps}, v{ex[2].reg}', ex[2:3], qb)
            light(f'v_add_f32 v{ps}, v{ps}, v{ex[3].reg}', ex[3:4], qb)
            light(f'v_cvt_pk_bf16_f32 v{Pr(buf,qb)+2*kb+1}, v{ex[2].reg}, v{ex[3].reg}', ex[2:4])
    t = TMP
    a = Op(f'v_max3_f32 v{t}, v{PS}, v{PS+1}, v{PS+2}', deps=[lastps[0], lastps[1], lastps[2]] + readers[t], pri=2)
    b = Op(f'v_max_f32 v{t}, v{t}, v{PS+3}', deps=[a, lastps[3]], pri=2)
    c = Op(f'v_cmp_nge_f32 vcc, s{sTHR}, v{t}', deps=[b], pri=2)
    return ops + [a, b, c]

def renorm(S, buf, first):
    mx, t, f = TMP, TMP+1, TMP+1
    for qb in range(4):
        a, b = Sr(0, qb), Sr(1, qb)
        S(f'v_max3_f32 v{mx}, v{a}, v{a+1}, v{a+2}')
        S(f'v_max3_f32 v{mx}, v{mx}, v{a+3}, v{b}')
        S(f'v_max3_f32 v{mx}, v{mx}, v{b+1}, v{b+2}')
        S(f'v_max_f32 v{mx}, v{mx}, v{b+3}')
        allreduce_kg(S, mx, t, 'v_max_f32')
        if first:
            for r in range(4): S(f'v_sub_f32 v{NM+4*qb+r}, 0, v{mx}')
        else:
            S(f'v_max_f32 v{mx}, 0, v{mx}')
            for r in range(4): S(f'v_sub_f32 v{NM+4*qb+r}, v{NM+4*qb+r}, v{mx}')
            S(f'v_sub_f32 v{f}, 0, v{mx}')
            S(f'v_exp_f32 v{f}, v{f}')
            S(f'v_mul_f32 v{L_+qb}, v{L_+qb}, v{f}')
            for j in range(16):
                for r in range(4): S(f'v_accvgpr_read_b32 v{TMP+2+r}, a{Or(j,qb)+r}')
                for r in range(4): S(f'v_mul_f32 v{TMP+2+r}, v{TMP+2+r}, v{f}')
                for r in range(4): S(f'v_accvgpr_write_b32 a{Or(j,qb)+r}, v{TMP+2+r}')
        for kb in range(2):
            for r in range(4): S(f'v_sub_f32 v{Sr(kb,qb)+r}, v{Sr(kb,qb)+r}, v{mx}')
        for kb in range(2):
            for txt in softmax_linear(buf, kb, qb, 2): S(txt)

DMA_POS = [2, 6, 14, 18, 26, 30, 38, 46, 54, 62, 70, 78, 86, 94, 102, 106]
def iteration(S, par, roles, dma, nextK=True, label=None, zeroB=False, warm=False):
    KR, VR, KN, D1, D2 = roles
    m = mfma_A() + mfma_B(par, zero=zeroB)
    ops = []
    for f in range(32):
        tgt = f + AHEAD
        g = f*4
        if tgt >= 32 and not nextK: continue
        if tgt == 32:
            ops.append(Op('', fixed=g, waittag='V')); ops.append(Op('s_barrier', fixed=g))
        rd = k_read(tgt % 32) if (tgt % 32) < 16 else v_read(tgt)
        if OPT.get('rdpack', 0):
            g0 = g - 3 if (f >= 16 and f % 2 == 1 and OPT.get('b2', 1)) else g
            for k, t in enumerate(rd): ops.append(Op(t, fixed=g0))
        else:
            g0 = g - 2 if (f >= 16 and f % 2 == 1 and OPT.get('b2', 1)) else g
            for k, t in enumerate(rd): ops.append(Op(t, fixed=g0 + k))
        if tgt == 15:
            a = Op(f's_sub_u32 s{sDK}, s{KN}, s{KR}', lo=0, pri=0); ops.append(a)
            for r in KA_: ops.append(Op(f'v_add_u32 v{r}, s{sDK}, v{r}', lo=g+1, deps=[a], pri=3))
        if tgt == 31:
            a = Op(f's_sub_u32 s{sDV}, s{D1}, s{VR}', lo=0, pri=0); ops.append(a)
            for r in VA_: ops.append(Op(f'v_add_u32 v{r}, s{sDV}, v{r}', lo=g+2, deps=[a], pri=0))
    for f in range(32):
        if f < 16 or f % 2 == 1 or not OPT.get('b2', 1): ops.append(Op([], fixed=f*4 + 3, c=1))
    for k, gr in enumerate(dma):
        g = DMA_POS[k]
        ops.append(Op(gr['pre'], fixed=g-1, c=len(gr['pre'])))
        ops.append(Op(gr['t'], fixed=g, c=2, tag=gr['tag']))
        if gr['post']: ops.append(Op(gr['post'], lo=g+1, pri=3))
    if warm:
        ops.append(Op(f'buffer_load_dword v{WD}, v{WA}, s[{SWM}:{SWM+3}], s{sWO} offen', fixed=58, c=2, tag='warm'))
        ops.append(Op(f's_add_u32 s{sWO}, s{sWO}, s{sWI}', lo=59, pri=3))
    ops += softmax_sched(par ^ 1)
    schedule(S, m, ops, verbose=f'iter {label}')
    S(f's_cbranch_vccnz L_rare_{label}')
    S(f'L_back_{label}:')
    for qb in range(4): S(f'v_add_f32 v{L_+qb}, v{L_+qb}, v{PS+qb}')

def merge_into(S, body, groups, every, start=0):
    gi = 0
    for n, ins in enumerate(body.l):
        S.l.append(ins)
        if n >= start and (n - start) % every == every - 1 and gi < len(groups):
            emit_groups(S, [groups[gi]]); gi += 1
    emit_groups(S, groups[gi:])

def gen_k2(debug=None):
    P = Prog('k2'); S = P.straight()
    S('s_cmp_ge_u32 s2, 256')
    S('s_cbranch_scc1 L_k2_end')
    S(f's_load_dwordx8 s[{sPTR}:{sPTR+7}], s[0:1], 0')
    S(f's_load_dwordx2 s[{sPTR+8}:{sPTR+9}], s[0:1], {KA["wo"]}')
    S(f's_load_dwordx2 s[{sPTR+10}:{sPTR+11}], s[0:1], {KA["ws"]}')
    S(f's_load_dwordx2 s[{sPTR+12}:{sPTR+13}], s[0:1], {KA["w1"]}')
    S(f's_load_dwordx2 s[{sPTR+14}:{sPTR+15}], s[0:1], {KA["w2"]}')
    stamp(S, 0)
    S(f's_and_b32 s{sG}, s2, 7')
    S(f's_lshr_b32 s{sRB}, s2, 3')
    LN_, I16, KG, DQ, L16, T64 = 8, 9, 10, 11, 16, 24
    LQ = [12, 13, 14, 15]
    t0, t1, t2, t3, t4, t5, t6 = 17, 18, 19, 20, 21, 22, 23
    S(f'v_lshrrev_b32 v{t0}, 6, v0')
    S(f'v_and_b32 v{LN_}, 63, v0')
    S(f'v_readfirstlane_b32 s{sW}, v{t0}')
    S(f'v_and_b32 v{I16}, 15, v0')
    S(f'v_bfe_u32 v{KG}, v0, 4, 2')
    S(f'v_lshlrev_b32 v{T64}, 6, v0')
    S(f'v_lshlrev_b32 v{L16}, 4, v{LN_}')
    S(f'v_mul_u32_u24 v{t0}, 896, v{I16}')
    S(f'v_lshl_add_u32 v{t0}, v{KG}, 4, v{t0}')
    S(f's_lshr_b32 s{sP}, s{sW}, 1')
    S(f's_and_b32 s{sS}, s{sW}, 1')
    S(f's_lshl_b32 s{sW4K}, s{sW}, 12')
    S(f's_lshl_b32 s{sT0}, s{sRB}, 6'); S(f's_lshl_b32 s{sT1}, s{sW}, 4'); S(f's_add_u32 s{sT0}, s{sT0}, s{sT1}')
    S(f's_mul_i32 s{sT0}, s{sT0}, 896')
    sHB = sT3
    S(f's_mul_i32 s{sHB}, s{sW}, 14336')
    S(f's_add_u32 s{sHB}, s{sHB}, {3*SLOT}')
    S(f's_add_u32 m0, s{sHB}, 10240')
    S(f's_lshl_b32 s{sQG}, s{sG}, 10')
    S('s_waitcnt lgkmcnt(0)')
    if OPT.get('diag'):
        S(f's_add_u32 s8, s{sPTR+10}, {WS_DBG}'); S(f's_addc_u32 s9, s{sPTR+11}, 0')
        S('s_lshl_b32 s10, s2, 2'); S('s_xor_b32 s11, s10, 32*4')
        S('s_load_dword s12, s[8:9], s10'); S('s_load_dword s13, s[8:9], s11')
        S('s_getreg_b32 s14, hwreg(HW_REG_XCC_ID)'); S('s_and_b32 s14, s14, 7')
        S('s_waitcnt lgkmcnt(0)')
        S('s_cmp_eq_u32 s12, s14' if OPT['diag'] == 1 else 's_cmp_eq_u32 s12, s13')
        S('s_cbranch_scc1 L_diag_ok')
        S('s_mov_b32 s15, 400')
        S('L_diag_l:'); S('s_sleep 8'); S('s_sub_u32 s15, s15, 1'); S('s_cmp_lg_u32 s15, 0'); S('s_cbranch_scc1 L_diag_l')
        S('L_diag_ok:')
    srd(S, SX, sPTR, SZ['x'])
    A0, XP, XF, MB = 32, 40, 96, 208
    for s in range(14):
        S(f'buffer_load_dwordx4 {vr(XP+4*s)}, v{t0}, s[{SX}:{SX+3}], s{sT0} offen offset:{64*s}')
    srd(S, SMOD, sPTR+10, 4096, add=WS_MODQ)
    for k in range(4):
        S(f'buffer_load_dwordx4 v{L16}, s[{SMOD}:{SMOD+3}], 0 offen offset:{1024*k} lds', tag='mod')
    srd(S, SWQ, sPTR+6, SZ['wq'])
    S(f'v_lshrrev_b32 v{t1}, 3, v{LN_}')
    S(f'v_and_b32 v{t2}, 7, v{LN_}')
    S(f'v_and_b32 v{t3}, 6, v{t1}')
    S(f'v_xor_b32 v{t3}, v{t3}, v{t2}')
    S(f'v_lshrrev_b32 v{t4}, 2, v{t1}')
    S(f'v_lshlrev_b32 v{t4}, 3, v{t4}')
    S(f'v_and_b32 v{t5}, 3, v{t1}')
    S(f'v_add_u32 v{t4}, v{t4}, v{t5}')
    S(f'v_lshlrev_b32 v{t4}, 13, v{t4}')
    S(f'v_lshl_add_u32 v{DQ}, v{t3}, 4, v{t4}')
    S(f's_lshl_b32 s{sT1}, s{sW}, 8')
    S(f'v_add_u32 v{DQ}, s{sT1}, v{DQ}')
    def wq_dma(k):
        out = []
        slot = ((k + 1) % 3) * SLOT
        for rg in range(4):
            for cg in range(2):
                pre = [f's_add_u32 m0, s{sW4K}, {slot + (rg>>1)*16384 + ((rg&1)*2+cg)*1024 - cg*128}']
                if cg == 0: pre.append(f's_add_u32 s{sT2}, s{sQG}, {k*262144 + (16*(rg&1) + 4*(rg>>1))*8192}')
                out.append(dict(pre=pre, t=[f'buffer_load_dwordx4 v{DQ}, s[{SWQ}:{SWQ+3}], s{sT2} offen offset:{cg*128} lds'], post=[], tag=f'wq{k}'))
        return out
    emit_groups(S, wq_dma(0))
    S(f's_lshl_b32 s{sT0}, s{sG}, 20')
    for d, ptr in ((SK, sPTR+2), (SV, sPTR+4)):
        S(f's_add_u32 s{d}, s{ptr}, s{sT0}'); S(f's_addc_u32 s{d+1}, s{ptr+1}, 0')
        S(f's_mov_b32 s{d+2}, {1<<20}'); S(f's_mov_b32 s{d+3}, 0x00020000')
    srd(S, SWO, sPTR+8, SZ['wo'])
    srd(S, SP1, sPTR+10, 256*57344, add=WS_P1)
    S(f'v_lshlrev_b32 v{t4}, 9, v{t1}')
    S(f'v_add_u32 v{t4}, s{sW4K}, v{t4}')
    S(f'v_lshl_add_u32 v{DV}, v{t3}, 4, v{t4}')
    S(f'v_lshrrev_b32 v{t5}, 1, v{t1}')
    S(f's_lshl_b32 s{sT1}, s{sS}, 2')
    S(f'v_or_b32 v{t5}, s{sT1}, v{t5}')
    S(f'v_xor_b32 v{t5}, v{t5}, v{t2}')
    S(f'v_lshl_add_u32 v{DK}, v{t5}, 4, v{t4}')
    S(f'v_and_b32 v{t0}, 1, v{KG}')
    S(f'v_lshlrev_b32 v{t0}, 2, v{t0}')
    S(f'v_lshrrev_b32 v{t1}, 2, v{I16}')
    S(f'v_add_u32 v{t0}, v{t0}, v{t1}')
    S(f'v_lshrrev_b32 v{t1}, 1, v{t0}')
    S(f'v_and_b32 v{t2}, 3, v{I16}')
    S(f'v_lshlrev_b32 v{t2}, 3, v{t2}')
    S(f'v_lshl_add_u32 v{t2}, v{t0}, 7, v{t2}')
    S(f'v_lshrrev_b32 v{t3}, 1, v{KG}')
    S(f's_lshl_b32 s{sT0}, s{sS}, 14')
    S(f's_add_u32 s{sT1}, s{sT0}, {2*SLOT}')
    for jj in range(4):
        S(f'v_xor_b32 v{t4}, {jj}, v{t1}')
        S(f'v_lshl_add_u32 v{t4}, v{t4}, 5, v{t2}')
        S(f'v_lshl_add_u32 v{LQ[jj]}, v{t3}, 11, v{t4}')
        S(f'v_add_u32 v{LQ[jj]}, s{sW4K}, v{LQ[jj]}')
        S(f'v_lshl_add_u32 v{VA_[jj]}, v{t3}, 12, v{t4}')
        S(f'v_add_u32 v{VA_[jj]}, s{sT1}, v{VA_[jj]}')
    S(f'v_lshrrev_b32 v{t0}, 3, v{I16}')
    S(f'v_and_b32 v{t1}, 7, v{I16}')
    S(f'v_lshrrev_b32 v{t2}, 1, v{t1}')
    S(f'v_lshl_or_b32 v{t2}, v{t0}, 2, v{t2}')
    S(f'v_xor_b32 v{t2}, v{t2}, v{KG}')
    S(f'v_lshlrev_b32 v{t2}, 4, v{t2}')
    S(f'v_lshl_add_u32 v{t2}, v{t1}, 7, v{t2}')
    S(f'v_lshl_add_u32 v{t2}, v{t0}, 12, v{t2}')
    S(f'v_add_u32 v{KA_[0]}, s{sT0}, v{t2}')
    S(f'v_xor_b32 v{KA_[1]}, 64, v{KA_[0]}')
    S(f's_mov_b32 s{sKT}, 0'); S(f's_mov_b32 s{sKT2}, 16384'); S(f's_mov_b32 s{sVT}, 0'); S(f's_mov_b32 s{sVT2}, 16384')
    for k in range(5): S(f's_add_u32 s{sSL[k]}, s{sW4K}, {k*SLOT}')
    S(f's_mov_b32 s{sTHR}, {f32(2.0**24)}')
    MR, HW = t5, t6
    S(f'v_lshlrev_b32 v{MR}, 5, v{KG}')
    S(f'v_add_u32 v{MR}, s{sHB}, v{MR}')
    S(f'v_add_u32 v{HW}, s{sHB}, v{L16}')
    S(f's_lshl_b32 s{sT0}, s{sG}, 5'); S(f's_add_u32 s{sT0}, s{sT0}, s{sRB}'); S(f's_mul_i32 s{sT0}, s{sT0}, 14336')
    S(f's_mul_i32 s{sT1}, s{sS}, 7168'); S(f's_add_u32 s{sT0}, s{sT0}, s{sT1}')
    S(f's_add_u32 s{SWM}, s{sPTR+8}, s{sT0}'); S(f's_addc_u32 s{SWM+1}, s{sPTR+9}, 0')
    S(f's_mov_b32 s{SWM+2}, 7168'); S(f's_mov_b32 s{SWM+3}, 0x00020000')
    S(f's_mov_b32 s{sWO}, 0'); S(f's_mov_b32 s{sWI}, 2048'); S(f's_mov_b32 s{sDK}, 1024')
    S(f's_cmp_ge_u32 s{sW}, 2')
    S('s_cbranch_scc1 L_k2_wm')
    S(f's_cmp_eq_u32 s{sW}, 0')
    S(f's_cselect_b32 s{SWM}, s{SK}, s{SV}'); S(f's_cselect_b32 s{SWM+1}, s{SK+1}, s{SV+1}')
    S(f's_mov_b32 s{SWM+2}, {1<<20}')
    S(f's_lshl_b32 s{sWO}, s{sRB}, 10'); S(f's_add_u32 s{sWO}, s{sWO}, {8*32768}')
    S(f's_mov_b32 s{sWI}, 65536'); S(f's_mov_b32 s{sDK}, 32768')
    S('L_k2_wm:')
    S(f'v_mul_lo_u32 v{T64}, v{KG}, s{sDK}')
    S(f'v_lshl_add_u32 v{T64}, v{I16}, 6, v{T64}')
    S(f'v_cmp_gt_u32 vcc, 32, v{LN_}'); S(f'v_mov_b32 v{t0}, 0x7fffffff'); S(f'v_cndmask_b32 v{T64}, v{t0}, v{T64}, vcc')
    warm = []

    if STAMPS['on']: S(f'v_mov_b32 v{A0}, v{XP+55}')
    stamp(S, 1)
    B = Seq()
    for d in range(56):
        B(f'v_lshlrev_b32 v{XF+2*d}, 16, v{XP+d}')
        B(f'v_and_b32 v{XF+2*d+1}, 0xffff0000, v{XP+d}')
        if d % 2 == 1:
            k = (d // 2) % 4
            if d < 8: B(f'v_pk_add_f32 {vr(A0+2*k,2)}, {vr(XF+2*d-2,2)}, {vr(XF+2*d,2)}')
            else:
                B(f'v_pk_add_f32 {vr(A0+2*k,2)}, {vr(A0+2*k,2)}, {vr(XF+2*d-2,2)}')
                B(f'v_pk_add_f32 {vr(A0+2*((k+2)%4),2)}, {vr(A0+2*((k+2)%4),2)}, {vr(XF+2*d,2)}')
    B(f'v_pk_add_f32 {vr(A0,2)}, {vr(A0,2)}, {vr(A0+2,2)}')
    B(f'v_pk_add_f32 {vr(A0+4,2)}, {vr(A0+4,2)}, {vr(A0+6,2)}')
    B(f'v_pk_add_f32 {vr(A0,2)}, {vr(A0,2)}, {vr(A0+4,2)}')
    B(f'v_add_f32 v{A0}, v{A0}, v{A0+1}')
    allreduce_kg(B, A0, A0+1, 'v_add_f32')
    B(f'v_mul_f32 v{A0}, {f32(-1.0/448)}, v{A0}')
    B(f'v_mov_b32 v{A0+1}, v{A0}')
    B0 = XP
    for d in range(56):
        B(f'v_pk_add_f32 {vr(XF+2*d,2)}, {vr(XF+2*d,2)}, {vr(A0,2)}')
        if d >= 1:
            e = d - 1
            if e < 4: B(f'v_pk_mul_f32 {vr(B0+2*e,2)}, {vr(XF+2*e,2)}, {vr(XF+2*e,2)}')
            else: B(f'v_pk_fma_f32 {vr(B0+2*(e%4),2)}, {vr(XF+2*e,2)}, {vr(XF+2*e,2)}, {vr(B0+2*(e%4),2)}')
    B(f'v_pk_fma_f32 {vr(B0+6,2)}, {vr(XF+110,2)}, {vr(XF+110,2)}, {vr(B0+6,2)}')
    B(f'v_pk_add_f32 {vr(B0,2)}, {vr(B0,2)}, {vr(B0+2,2)}')
    B(f'v_pk_add_f32 {vr(B0+4,2)}, {vr(B0+4,2)}, {vr(B0+6,2)}')
    B(f'v_pk_add_f32 {vr(B0,2)}, {vr(B0,2)}, {vr(B0+4,2)}')
    B(f'v_add_f32 v{A0}, v{B0}, v{B0+1}')
    B.waittag('mod')
    def mod_regs(s):
        if s < 10: return MB + 16*(s % 3)
        return {10: MB, 11: MB+16, 12: MB+32, 13: B0+8}[s]
    def mod_read(s):
        b = mod_regs(s)
        B(f'ds_read_b128 {vr(b)}, v{MR} offset:{10240 + s*128}')
        B(f'ds_read_b128 {vr(b+4)}, v{MR} offset:{10240 + s*128 + 16}')
        B(f'ds_read_b128 {vr(b+8)}, v{MR} offset:{10240 + 1792 + s*128}')
        B(f'ds_read_b128 {vr(b+12)}, v{MR} offset:{10240 + 1792 + s*128 + 16}')
    def mod_apply(s):
        b = mod_regs(s); x = XF + 8*s
        for k in range(4): B(f'v_pk_mul_f32 {vr(x+2*k,2)}, {vr(x+2*k,2)}, {vr(A0,2)}')
        for k in range(4): B(f'v_pk_fma_f32 {vr(x+2*k,2)}, {vr(x+2*k,2)}, {vr(b+8+2*k,2)}, {vr(b+2*k,2)}')
        h = B0 + 4*(s % 2)
        for k in range(4): B(f'v_cvt_pk_bf16_f32 v{h+k}, v{x+2*k}, v{x+2*k+1}')
        B(f'ds_write_b128 v{HW}, {vr(h)} offset:{s*1024}')
    mod_read(0); mod_read(1); mod_read(13)
    allreduce_kg(B, A0, A0+1, 'v_add_f32')
    B(f'v_mov_b32 v{A0+2}, {f32(1e-5)}')
    B(f'v_fmac_f32 v{A0+2}, {f32(1.0/448)}, v{A0}')
    B(f'v_rsq_f32 v{A0}, v{A0+2}')
    B(f'v_mov_b32 v{A0+1}, v{A0}')
    order = list(range(10))
    for s in range(10):
        if s + 2 < 10: mod_read(s + 2)
        mod_apply(s)
        if s == 7: pass
    for s in (10, 11, 12): mod_read(s)
    for s in (13, 10, 11, 12): mod_apply(s)
    merge_into(S, B, wq_dma(1) + wq_dma(2) + warm, every=12, start=8)
    S(f'v_add_u32 v{t0}, {3*SLOT}, v{L16}')
    S('s_waitcnt lgkmcnt(0)')
    S('s_barrier')
    stamp(S, 2)
    def Hr(qb, s): return vr(32 + ((s & 1)*4+qb)*4)
    QF = 96
    def qfr(n): return QF + 4*(n % 8)
    cur = [0]
    def q_reads(n):
        k, j = n // 8, n % 8
        cg, jj = j >> 2, j & 3
        slot = ((k + 1) % 3) * SLOT
        base = slot // 65536 * 65536
        out = []
        if j == 0:
            out.append(dict(waittag=f'wq{k}'))
            d = base - cur[0]
            if d:
                for a in LQ: out.append(dict(t=f'v_add_u32 v{a}, {d & 0xffffffff}, v{a}'))
            cur[0] = base
        o = slot - base + cg*1024
        out.append(dict(t=f'ds_read_b64_tr_b16 {vr(qfr(n),2)}, v{LQ[jj]} offset:{o}'))
        out.append(dict(t=f'ds_read_b64_tr_b16 {vr(qfr(n)+2,2)}, v{LQ[jj]} offset:{o+16384}'))
        return out
    def h_read(s, qb):
        return f'ds_read_b128 {Hr(qb,s)}, v{t0} offset:{qb*14336 + s*1024}'
    QAH = 5
    for qb in range(4): S(h_read(0, qb))
    for n in range(QAH):
        for f in q_reads(n):
            if 'waittag' in f: S.waittag(f['waittag'])
            else: S(f['t'])
    stamp(S, 3)
    QA = 128
    m = []; F = []
    for n in range(112):
        k, j = n // 8, n % 8
        for qb in range(4):
            acc = vr(QA + Or(j, qb))
            m.append(f'{MF} {acc}, {vr(qfr(n))}, {Hr(qb,k)}, {acc if k else "0"}')
        if n + QAH < 112:
            for f in q_reads(n + QAH):
                f.update(lo=n*4, c=1, chain='rd'); F.append(f)
        if k + 1 < 14 and j < 4:
            F.append(dict(t=h_read(k + 1, j), lo=n*4 + 2, c=1, chain='rd'))
    for k in range(13):
        groups = wq_dma(k + 3) if k + 3 < 14 else kv_groups('K', sSL[k - 11])
        for i, gr in enumerate(groups):
            g = (k + 1)*32 + 2 + 3*i
            F.append(dict(t=gr['pre'], lo=g-1, c=1, chain='dma'))
            F.append(dict(t=gr['t'] + gr['post'], lo=g, c=2, tag=gr['tag'], chain='dma'))
    F.sort(key=lambda f: f['lo'])
    interleave(S, m, F, cap=3)
    stamp(S, 4)
    emit_groups(S, kv_groups('V', sSL[2]))
    S(f'v_lshlrev_b32 v{t0}, 4, v{I16}')
    S(f'v_lshrrev_b32 v{t1}, 1, v{KG}')
    S(f'v_lshl_add_u32 v{t0}, v{t1}, 8, v{t0}')
    S(f'v_and_b32 v{t1}, 1, v{KG}')
    S(f'v_lshl_add_u32 v{t0}, v{t1}, 3, v{t0}')
    S(f's_lshl_b32 s{sT0}, s{sP}, 15'); S(f's_add_u32 s{sT0}, s{sT0}, {3*SLOT}')
    S(f's_lshl_b32 s{sT1}, s{sS}, 12'); S(f's_add_u32 s{sT1}, s{sT1}, s{sT0}')
    S(f'v_add_u32 v{t0}, s{sT1}, v{t0}')
    S(f'v_add_u32 v{TMP}, s{sT0}, v{L16}')
    S(f'v_mov_b32 v{TMP+1}, v{L16}')
    S(f'v_mov_b32 v{WA}, v{T64}')
    for j in range(8):
        for qb in range(4):
            a = QA + Or(j, qb); t = 32 + 2*(j*4+qb)
            S(f'v_cvt_pk_bf16_f32 v{t}, v{a}, v{a+1}')
            S(f'v_cvt_pk_bf16_f32 v{t+1}, v{a+2}, v{a+3}')
    S('s_barrier')
    for j in range(8):
        for qb in range(4):
            t = 32 + 2*(j*4+qb)
            S(f'ds_write_b64 v{t0}, {vr(t,2)} offset:{(qb*8 + (j>>1))*1024 + (j&1)*512}')
    S.waittag('K')
    S('s_waitcnt lgkmcnt(0)')
    S('s_barrier')
    for f in range(AHEAD):
        for t in k_read(f): S(t)
    for st in range(8):
        for qb in range(4):
            S(f'ds_read_b128 {vr(Qr(qb,st))}, v{TMP} offset:{(qb*8+st)*1024}')
    if debug: srd(S, SDBG, sPTR+10, 32 << 20, add=WS_DBG)
    if debug == 'q':
        S(f's_lshl_b32 s{sT0}, s2, 2'); S(f's_add_u32 s{sT0}, s{sT0}, s{sW}'); S(f's_lshl_b32 s{sT0}, s{sT0}, 15')
        for f in range(32):
            S(f'buffer_store_dwordx4 {vr(Q_+4*f)}, v{TMP+1}, s[{SDBG}:{SDBG+3}], s{sT0} offen')
            S(f's_add_u32 s{sT0}, s{sT0}, 1024')
        S('s_waitcnt vmcnt(0)')
    F = []
    for f in range(16 - AHEAD):
        F.append(dict(t=k_read(f + AHEAD), lo=f*4, c=1))
    F.append(dict(t='s_barrier', lo=33, c=1, chain='dma'))
    for i, gr in enumerate(kv_groups('K', sSL[3])):
        F.append(dict(t=gr['pre'], lo=34 + 3*i, c=1, chain='dma'))
        F.append(dict(t=gr['t'] + gr['post'], lo=35 + 3*i, c=2, tag=gr['tag'], chain='dma'))
    F.sort(key=lambda f: f['lo'])
    interleave(S, mfma_A(first_c='0'), F, cap=3)
    for a in KA_: S(f'v_add_u32 v{a}, {SLOT}, v{a}')
    for f in range(AHEAD):
        for t in k_read(f): S(t)
    S.waittag('V')
    S('s_barrier')
    renorm(S, 0, True)
    for qb in range(4): S(f'v_mov_b32 v{L_+qb}, v{PS+qb}')
    S(f's_mov_b32 s{sCNT}, 0')
    stamp(S, 5)
    if STAMPS['on']: S('s_waitcnt lgkmcnt(0)')

    def perm(r): KR, VR, KN, D1, D2 = r; return (KN, D1, D2, KR, VR)
    def both(r): return kv_groups('V', r[3]) + kv_groups('K', r[4])
    r0 = (sSL[1], sSL[2], sSL[3], sSL[4], sSL[0])
    r1 = perm(r0); r2 = perm(r1); r3 = perm(r2); r4 = perm(r3)
    iteration(S, 0, r0, both(r0), label='f', zeroB=True)
    iteration(S, 1, r1, both(r1), label='g')
    Lp = P.loop()
    Lp('.p2align 6'); Lp('L_k2_loop:')
    iteration(Lp, 0, r2, both(r2), label='a', warm=True)
    iteration(Lp, 1, r3, both(r3), label='b')
    mp = {r2[k]: r4[k] for k in range(5)}
    start = r2[0]
    Lp(f's_mov_b32 s{sT0}, s{start}')
    d = start
    while mp[d] != start:
        Lp(f's_mov_b32 s{d}, s{mp[d]}'); d = mp[d]
    Lp(f's_mov_b32 s{d}, s{sT0}')
    Lp(f's_add_u32 s{sCNT}, s{sCNT}, 1')
    Lp(f's_cmp_lt_u32 s{sCNT}, 13')
    Lp('s_cbranch_scc1 L_k2_loop')
    S = P.straight()
    iteration(S, 0, r2, both(r2), label='c')
    iteration(S, 1, r3, kv_groups('V', r3[3]), label='d')
    iteration(S, 0, r4, kv_groups('V', r4[3]), nextK=False, label='e')
    return P, S

RARE = {'f': 1, 'g': 0, 'a': 1, 'b': 0, 'c': 1, 'd': 0, 'e': 1}
```

```python
from k2 import *


def proj_out(S, nsteps, bfrag_addr, srd_w, s_wbase, row_bytes, ring_s, ring_v, WV, ACC, srd_out, s_out, VO, VO2,
             pre_issued, tagp, BF=16, AF=48, stamp_idx=8):
    NR = len(ring_s)
    def w_dma(k):
        out = []
        for n in range(7):
            pre = [f's_add_u32 m0, s{ring_s[k % NR]}, {n*1024}']
            if n == 0: pre.append(f's_add_u32 s{sT0}, s{s_wbase}, {k*32*row_bytes}')
            out.append(dict(pre=pre, t=[f'buffer_load_dwordx4 v{WV+n}, s[{srd_w}:{srd_w+3}], s{sT0} offen lds'], tag=f'{tagp}{k}'))
        return out
    def afr(n): return AF + 4*(n % 8)
    def bfr(k, qb): return BF + ((k & 1)*4 + qb)*4
    def a_reads(n):
        k, i = n // 7, n % 7
        out = []
        if i == 0: out.append(dict(waittag=f'{tagp}{k}'))
        out.append(dict(t=f'ds_read_b64_tr_b16 {vr(afr(n),2)}, v{ring_v[k % NR]} offset:{i*32}'))
        out.append(dict(t=f'ds_read_b64_tr_b16 {vr(afr(n)+2,2)}, v{ring_v[k % NR]} offset:{3584 + i*32}'))
        return out
    def b_read(k, qb):
        a, o = bfrag_addr(k, qb)
        return f'ds_read_b128 {vr(bfr(k,qb))}, v{a} offset:{o}'
    AH = 5
    for qb in range(4): S(b_read(0, qb))
    for n in range(AH):
        for f in a_reads(n):
            if 'waittag' in f: S.waittag(f['waittag'])
            else: S(f['t'])
    m = []; F = []
    N = nsteps * 7
    for n in range(N):
        k, i = n // 7, n % 7
        for qb in range(4):
            acc = vr(ACC + (i*4+qb)*4)
            m.append(f'{MF} {acc}, {vr(afr(n))}, {vr(bfr(k,qb))}, {acc if k else "0"}')
        if n + AH < N:
            for f in a_reads(n + AH):
                f.update(lo=n*4, c=1, chain='rd'); F.append(f)
        if k + 1 < nsteps and i < 2:
            F.append(dict(t=b_read(k+1, 2*i), lo=n*4 + 2, c=1, chain='rd'))
            F.append(dict(t=b_read(k+1, 2*i+1), lo=n*4 + 3, c=1, chain='rd'))
    for k in range(nsteps):
        if k + NR < nsteps and k + NR >= pre_issued:
            for i, gr in enumerate(w_dma(k + NR)):
                g = (k + 1)*28 + 4*i + 2
                F.append(dict(t=gr['pre'], lo=g-1, c=1, chain='dma'))
                F.append(dict(t=gr['t'], lo=g, c=2, tag=gr['tag'], chain='dma'))
    F.sort(key=lambda f: f['lo'])
    interleave(S, m, F, cap=3)
    stamp(S, stamp_idx)
    n = 0
    for qb in range(4):
        S(f's_add_u32 s{sT0}, s{s_out}, {2*qb*57344}')
        for ip in range(3):
            t = BF + 4*(n % 8); n += 1
            for hlf in range(2):
                a = ACC + ((2*ip+hlf)*4+qb)*4
                S(f'v_cvt_pk_bf16_f32 v{t+2*hlf}, v{a}, v{a+1}')
                S(f'v_cvt_pk_bf16_f32 v{t+2*hlf+1}, v{a+2}, v{a+3}')
            S(f'buffer_store_dwordx4 {vr(t)}, v{VO}, s[{srd_out}:{srd_out+3}], s{sT0} offen offset:{ip*512} {OPT.get("pst", "sc0 sc1")}')
        t = BF + 4*(n % 8); n += 1
        a = ACC + (6*4+qb)*4
        S(f'v_cvt_pk_bf16_f32 v{t}, v{a}, v{a+1}')
        S(f'v_cvt_pk_bf16_f32 v{t+1}, v{a+2}, v{a+3}')
        S(f'buffer_store_dwordx2 {vr(t,2)}, v{VO2}, s[{srd_out}:{srd_out+3}], s{sT0} offen {OPT.get("pst", "sc0 sc1")}')
    return w_dma

def proj_lane_setup(S, LN_, I16, KG, WV, LT, VO, VO2, row_bytes, t0, t1):
    S(f's_mul_i32 s{sT1}, s{sW}, 224')
    for n in range(7):
        S(f'v_add_u32 v{t0}, {64*n}, v{LN_}')
        S(f'v_mul_u32_u24 v{t1}, 4682, v{t0}')
        S(f'v_lshrrev_b32 v{t1}, 16, v{t1}')
        S(f'v_mul_u32_u24 v{WV+n}, {row_bytes - 224}, v{t1}')
        S(f'v_lshl_add_u32 v{WV+n}, v{t0}, 4, v{WV+n}')
        S(f'v_add_u32 v{WV+n}, s{sT1}, v{WV+n}')
    S(f'v_lshrrev_b32 v{t0}, 2, v{I16}')
    S(f'v_lshl_add_u32 v{t0}, v{KG}, 2, v{t0}')
    S(f'v_mul_u32_u24 v{t0}, 224, v{t0}')
    S(f'v_and_b32 v{t1}, 3, v{I16}')
    S(f'v_lshl_add_u32 v{LT}, v{t1}, 3, v{t0}')
    S(f'v_lshrrev_b32 v{t0}, 3, v{I16}')
    S(f'v_mul_u32_u24 v{t0}, 57344, v{t0}')
    S(f'v_and_b32 v{t1}, 7, v{I16}')
    S(f'v_lshl_add_u32 v{t1}, v{KG}, 3, v{t1}')
    S(f'v_lshl_add_u32 v{VO}, v{t1}, 4, v{t0}')
    S(f'v_lshl_add_u32 v{VO2}, v{t1}, 3, v{t0}')
    S(f'v_add_u32 v{VO2}, 1536, v{VO2}')

def gen_k2_full(debug=None):
    P, S = gen_k2(debug)
    del S.l[-4:]
    LN_, I16, KG = 16, 17, 18
    WV = 20; LT = 27; VO = 28; VO2 = 29; L16 = [30, 31, 32]; RV = [33, 34, 35]
    XW, XR, t0, t1 = 36, 37, 38, 39
    SC = 40
    MLW, MLR = 0, 1
    for qb in range(4): S(f'v_add_f32 v{NM+4*qb+1}, v{L_+qb}, v{PS+qb}')
    S(f'v_mbcnt_lo_u32_b32 v{LN_}, -1, 0')
    S(f'v_mbcnt_hi_u32_b32 v{LN_}, -1, v{LN_}')
    S(f's_lshl_b32 s{sT1}, s{sW}, 11'); S(f's_add_u32 s{sT1}, s{sT1}, {3*SLOT}')
    S(f'v_lshlrev_b32 v{MLW}, 3, v{LN_}')
    S(f'v_add_u32 v{MLW}, s{sT1}, v{MLW}')
    for qb in range(4): S(f'ds_write_b64 v{MLW}, {vr(NM+4*qb,2)} offset:{qb*512}')
    S(f'v_xor_b32 v{MLR}, 2048, v{MLW}')
    S.waittag('V')
    S('s_waitcnt lgkmcnt(0)')
    S('s_barrier')
    jmap = list(range(8, 16)) + list(range(8))
    for qb in range(4): S(f'ds_read_b64 {vr(NM+4*qb+2,2)}, v{MLR} offset:{qb*512}')
    for f in range(16, 16 + AHEAD):
        for t in v_read(f, jmap): S(t)
    sR = [40, 41, 42]; sXW, sXR, sWB, sOUT = 43, 44, 45, 46
    SW1, SW2 = SX, SWQ
    U = Seq()
    U(f'v_lshlrev_b32 v{L16[0]}, 4, v{LN_}')
    U(f's_lshl_b32 s{sXW}, s{sW}, 15')
    U(f'v_add_u32 v{XW}, s{sXW}, v{L16[0]}')
    n_early = len(U.l)
    for qb in range(4):
        n0, l0, n1, l1 = NM+4*qb, NM+4*qb+1, NM+4*qb+2, NM+4*qb+3
        U(f'v_min_f32 v{t0}, v{n0}, v{n1}')
        U(f'v_sub_f32 v{n0}, v{t0}, v{n0}')
        U(f'v_sub_f32 v{n1}, v{t0}, v{n1}')
        U(f'v_exp_f32 v{n0}, v{n0}')
        U(f'v_exp_f32 v{n1}, v{n1}')
        U(f'v_mul_f32 v{l0}, v{l0}, v{n0}')
        U(f'v_fmac_f32 v{l0}, v{l1}, v{n1}')
        if qb == 3: n_ml = len(U.l)
        allreduce_kg(U, l0, l1, 'v_add_f32')
        U(f'v_rcp_f32 v{l0}, v{l0}')
        U(f'v_mul_f32 v{SC+4*qb}, v{n0}, v{l0}')
        U(f'v_mul_f32 v{SC+4*qb+1}, v{n0}, v{l0}')
        U(f'v_mul_f32 v{SC+4*qb+2}, v{n1}, v{l0}')
        U(f'v_mul_f32 v{SC+4*qb+3}, v{n1}, v{l0}')
    U(f'v_and_b32 v{I16}, 15, v{LN_}')
    U(f'v_lshrrev_b32 v{KG}, 4, v{LN_}')
    proj_lane_setup(U, LN_, I16, KG, WV, LT, VO, VO2, 896, t0, t1)
    U(f's_xor_b32 s{sXR}, s{sXW}, {SLOT}')
    U(f's_lshl_b32 s{sR[0]}, s{sW}, 13'); U(f's_add_u32 s{sR[0]}, s{sR[0]}, {4*SLOT}')
    U(f's_add_u32 s{sR[1]}, s{sXR}, 16384'); U(f's_add_u32 s{sR[2]}, s{sXR}, {16384+7168}')
    U(f's_mul_i32 s{sWB}, s{sG}, {512*896}')
    U(f's_mul_i32 s{sOUT}, s{sRB}, {8*57344}')
    U(f's_mul_i32 s{sT1}, s{sG}, 7168'); U(f's_add_u32 s{sOUT}, s{sOUT}, s{sT1}')
    U(f's_mul_i32 s{sT1}, s{sW}, 1792'); U(f's_add_u32 s{sOUT}, s{sOUT}, s{sT1}')
    for k in range(3): U(f'v_add_u32 v{RV[k]}, s{sR[k]}, v{LT}')
    U(f'v_add_u32 v{L16[1]}, 65536, v{L16[0]}')
    U(f'v_add_u32 v{XR}, s{sXR}, v{L16[0]}')
    srd(U, SW1, sPTR+12, SZ['w1']); srd(U, SW2, sPTR+14, SZ['w2'])
    U(f's_lshl_b32 s{sT2}, s{sW}, 6'); U(f'v_add_u32 v{t0}, s{sT2}, v{LN_}')
    if (OPT.get('k4map', 2) == 1 or OPT.get('fuse', 1)):
        sh, nthr, gmul, w2b = 3, 112, 448, 7*896
        U(f's_mov_b32 s{sDK}, s{sG}')
    else:
        sh, nthr, gmul, w2b = 4, 224, 896, 14*896
        U(f's_and_b32 s{sDK}, s{sG}, 3')
    U(f'v_lshrrev_b32 v{t1}, {sh}, v{t0}'); U(f'v_mul_u32_u24 v{t1}, 3584, v{t1}')
    U(f'v_and_b32 v56, {(1<<sh)-1}, v{t0}'); U(f'v_lshl_add_u32 v{t1}, v56, 6, v{t1}')
    U(f'v_cmp_gt_u32 vcc, {nthr}, v{t0}'); U(f'v_mov_b32 v57, 0x7fffffff'); U(f'v_cndmask_b32 v{t1}, v57, v{t1}, vcc')
    U(f's_mul_i32 s{sT2}, s{sRB}, {14*3584}'); U(f's_mul_i32 s{sT3}, s{sDK}, {gmul}'); U(f's_add_u32 s{sT2}, s{sT2}, s{sT3}')
    U(f'buffer_load_dword v58, v{t1}, s[{SW1}:{SW1+3}], s{sT2} offen')
    U(f'v_lshlrev_b32 v{t0}, 6, v{t0}'); U(f'v_cndmask_b32 v{t0}, v57, v{t0}, vcc')
    U(f's_lshl_b32 s{sT2}, s{sDK}, 5'); U(f's_add_u32 s{sT2}, s{sT2}, s{sRB}'); U(f's_mul_i32 s{sT2}, s{sT2}, {w2b}')
    U(f'buffer_load_dword v59, v{t0}, s[{SW2}:{SW2+3}], s{sT2} offen')
    F = []
    for n in range(16 - AHEAD):
        for k, t in enumerate(v_read(16 + n + AHEAD, jmap)): F.append(dict(t=t, lo=n*4 + k, hi=n*4 + k, c=1))
    for n in range(16): F.append(dict(t=[], lo=n*4+3, hi=n*4+3, c=1))
    F.append(dict(t=f'v_mov_b32 v{t1}, v{NM+15}', lo=6, hi=6, c=1))
    F.append(dict(t='s_barrier', lo=6, hi=6, c=1))
    for gi, (n, qb) in enumerate(B_ORDER()[:32]):
        if True:
            g = gi + 7
            F.append(dict(t=f'ds_write_b128 v{XW}, {ar(Or(8+n,qb))} offset:{(n*4+qb)*1024}', lo=g, hi=g, c=1))
    for ins in U.l: F.append(dict(t=ins.text, lo=0, c=2 if ins.kind == 'trans' else 1, chain='u'))
    interleave(S, mfma_B(1, jmap=jmap), F, cap=3)
    stamp(S, 6)
    S('s_waitcnt lgkmcnt(0)')
    S('s_barrier')
    RB = 128
    for jj in range(8):
        for qb in range(4):
            S(f'ds_read_b128 {vr(RB+(jj*4+qb)*4)}, v{XR} offset:{(jj*4+qb)*1024}')
    def wdma(k):
        for n in range(7):
            S(f's_add_u32 m0, s{sR[k]}, {n*1024}')
            if n == 0: S(f's_add_u32 s{sT1}, s{sWB}, {k*32*896}')
            S(f'buffer_load_dwordx4 v{WV+n}, s[{SWO}:{SWO+3}], s{sT1} offen lds', tag=f'wo{k}')
    wdma(0)
    n = 0
    for u in range(4):
        for qb in range(4):
            t = 64 + 12*(n % 4); n += 1
            for hlf in range(2):
                jj = 2*u + hlf
                o = t + 4*hlf
                for r in range(4): S(f'v_accvgpr_read_b32 v{o+r}, a{Or(jj,qb)+r}')
                rb = RB + (jj*4+qb)*4
                for k in range(2): S(f'v_pk_mul_f32 {vr(o+2*k,2)}, {vr(o+2*k,2)}, {vr(SC+4*qb,2)}')
                for k in range(2): S(f'v_pk_fma_f32 {vr(o+2*k,2)}, {vr(rb+2*k,2)}, {vr(SC+4*qb+2,2)}, {vr(o+2*k,2)}')
            for k in range(4): S(f'v_cvt_pk_bf16_f32 v{t+8+k}, v{t+2*k}, v{t+2*k+1}')
            S(f'ds_write_b128 v{XR}, {vr(t+8)} offset:{(u*4+qb)*1024}')
            if u == 1 and qb == 0:
                S(f'v_mov_b32 v{t0}, v{RB+127}')
                wdma(1)
            if u == 2 and qb == 0: wdma(2)
            if debug == 'o':
                if n == 1:
                    S(f's_lshl_b32 s{sT2}, s2, 2'); S(f's_add_u32 s{sT2}, s{sT2}, s{sW}'); S(f's_lshl_b32 s{sT2}, s{sT2}, 14')
                S(f'buffer_store_dwordx4 {vr(t+8)}, v{L16[0]}, s[{SDBG}:{SDBG+3}], s{sT2} offen')
                S(f's_add_u32 s{sT2}, s{sT2}, 1024')
                S('s_waitcnt vmcnt(0)')
    S('s_waitcnt lgkmcnt(0)')
    S('s_barrier')
    stamp(S, 7)
    def baddr(k, qb):
        a = ((k >> 2) ^ 1)*SLOT + ((k & 3)*4 + qb)*1024
        return L16[a // 65536], a % 65536
    proj_out(S, 16, baddr, SWO, sWB, 896, sR, RV, WV, 128, SP1, sOUT, VO, VO2, 3, 'wo', BF=64, AF=96)
    if OPT.get('fuse', 1):
        import tail
        if STAMPS['on']:
            S('s_waitcnt lgkmcnt(0)')
            for i in range(9): S(f'v_mov_b32 v{240+i}, s{ST0+2*i}'); S(f'v_accvgpr_write_b32 a{i}, v{240+i}')
        tail.gen_tail(P, S, dict(LN_=LN_, I16=I16, KG=KG, WV=WV, LT=LT, VO=VO, VO2=VO2, L16=L16, sOUT=sOUT))
        if STAMPS['on']:
            S('s_waitcnt vmcnt(0)')
            stamp(S, 6)
            stamp_flush(S, 11, 3, sW, sPTR+10)
            for i in range(9): S(f'v_accvgpr_read_b32 v2, a{i}'); S(f'v_readfirstlane_b32 s{ST0+2*i}, v2')
            stamp_flush(S, 11, 1, sW, sPTR+10)
    else:
        if STAMPS['on']: S('s_waitcnt vmcnt(0)')
        stamp(S, 9)
        stamp_flush(S, 10, 1, sW, sPTR+10)
    S('L_k2_end:')
    S('s_endpgm')
    X = P.outofline()
    for i, (lab, buf) in enumerate(RARE.items()):
        X(f'L_rare_{lab}:')
        X(f's_mov_b32 s{sRET}, {i}')
        X(f's_branch L_renorm_{buf}')
    for buf in range(2):
        X(f'L_renorm_{buf}:')
        X('s_nop 15')
        renorm(X, buf, False)
        X('s_nop 3')
        mine = [(i, lab) for i, (lab, b) in enumerate(RARE.items()) if b == buf]
        for i, lab in mine[:-1]:
            X(f's_cmp_eq_u32 s{sRET}, {i}')
            X(f's_cbranch_scc1 L_back_{lab}')
        X(f's_branch L_back_{mine[-1][1]}')
    return P.finalize(), dict(name='k2_kernel', grid=256, block=256, lds=163840, vgpr=512, sgpr=102, accum=256)
```

```python
from k2e import *

def red_setup(S, name, ws_part, ptrs):
    S('s_cmp_ge_u32 s2, 256')
    S(f's_cbranch_scc1 L_{name}_end')
    for d, key in ptrs: S(f's_load_dwordx2 s[{d}:{d+1}], s[0:1], {KA[key]}')
    stamp(S, 0)
    S('v_lshrrev_b32 v9, 6, v0')
    S('v_and_b32 v1, 63, v0')
    S('v_readfirstlane_b32 s3, v9')
    S('v_and_b32 v2, 31, v0')
    S('v_bfe_u32 v3, v0, 5, 1')
    S('v_bfe_u32 v4, v0, 3, 2')
    S('v_and_b32 v5, 7, v0')
    S('v_mul_u32_u24 v9, 28672, v3')
    S('v_lshl_add_u32 v6, v2, 4, v9')
    S('v_lshl_add_u32 v7, v2, 3, v9')
    S('v_add_u32 v7, 1536, v7')
    S('s_mul_i32 s4, s2, 57344')
    S('s_mul_i32 s5, s3, 1792')
    S('s_add_u32 s4, s4, s5')
    S('s_waitcnt lgkmcnt(0)')

PR = 16
AC = 72
def red_load(S, srdp):
    for gi in range(4):
        S(f's_add_u32 s5, s4, {gi*7168}')
        b = PR + 14*gi
        for ip in range(3):
            S(f'buffer_load_dwordx4 {vr(b+4*ip)}, v6, s[{srdp}:{srdp+3}], s5 offen offset:{ip*512}')
        S(f'buffer_load_dwordx2 {vr(b+12,2)}, v7, s[{srdp}:{srdp+3}], s5 offen')
def red_sum(S):
    for d in range(14):
        S(f'v_lshlrev_b32 v{AC+2*d}, 16, v{PR+d}')
        S(f'v_and_b32 v{AC+2*d+1}, 0xffff0000, v{PR+d}')
    for gi in range(1, 4):
        for d in range(14):
            S(f'v_lshlrev_b32 v10, 16, v{PR+14*gi+d}')
            S(f'v_and_b32 v11, 0xffff0000, v{PR+14*gi+d}')
            S(f'v_pk_add_f32 {vr(AC+2*d,2)}, {vr(AC+2*d,2)}, v[10:11]')
    stamp(S, 1)
    for k in range(28):
        t = PR + k
        S(f'v_mov_b32 v{t}, v{AC+k}')
    for k in range(28):
        S(f'v_permlane32_swap_b32 v{AC+k}, v{PR+k}')
    for k in range(14):
        S(f'v_pk_add_f32 {vr(AC+2*k,2)}, {vr(AC+2*k,2)}, {vr(PR+2*k,2)}')

def row_reduce(S, x, t):
    S(f'v_add_f32_dpp v{x}, v{x}, v{x} row_ror:8 row_mask:0xf bank_mask:0xf')
    S(f'v_mov_b32 v{t}, v{x}')
    S(f'v_permlane16_swap_b32 v{x}, v{t}')
    S(f'v_add_f32 v{x}, v{x}, v{t}')

def layernorm28(S, X, ldsoff):
    a = 10
    S(f'v_pk_add_f32 v[10:11], {vr(X,2)}, {vr(X+2,2)}')
    for k in range(2, 14): S(f'v_pk_add_f32 v[10:11], v[10:11], {vr(X+2*k,2)}')
    S('v_add_f32 v10, v10, v11')
    row_reduce(S, 10, 11)
    S(f'v_mul_f32 v12, {f32(1.0/112)}, v10')
    S('v_sub_f32 v10, 0, v12'); S('v_sub_f32 v11, 0, v12')
    for k in range(14): S(f'v_pk_add_f32 {vr(X+2*k,2)}, {vr(X+2*k,2)}, v[10:11]')
    S(f'v_pk_mul_f32 v[10:11], {vr(X,2)}, {vr(X,2)}')
    for k in range(1, 14): S(f'v_pk_fma_f32 v[10:11], {vr(X+2*k,2)}, {vr(X+2*k,2)}, v[10:11]')
    S('v_add_f32 v13, v10, v11')
    row_reduce(S, 13, 11)
    S(f'ds_write_b64 v14, v[12:13] offset:{ldsoff}')
    S('s_waitcnt lgkmcnt(0)')
    S('s_barrier')
    S(f'ds_read_b128 {vr(PR)}, v15 offset:{ldsoff}')
    S(f'ds_read_b128 {vr(PR+4)}, v15 offset:{ldsoff+16}')
    m = [PR, PR+2, PR+4, PR+6]; q = [PR+1, PR+3, PR+5, PR+7]
    S(f'v_add_f32 v10, v{m[0]}, v{m[1]}'); S(f'v_add_f32 v11, v{m[2]}, v{m[3]}')
    S('v_add_f32 v10, v10, v11'); S('v_mul_f32 v10, 0.25, v10' if False else f'v_mul_f32 v10, {f32(0.25)}, v10')
    S(f'v_add_f32 v11, v{q[0]}, v{q[1]}'); S(f'v_add_f32 v11, v11, v{q[2]}'); S(f'v_add_f32 v11, v11, v{q[3]}')
    S(f'v_mov_b32 v13, {f32(1e-5)}')
    S(f'v_fmac_f32 v13, {f32(1.0/448)}, v11')
    for k in range(4):
        S(f'v_sub_f32 v{m[k]}, v{m[k]}, v10')
        S(f'v_mul_f32 v{m[k]}, v{m[k]}, v{m[k]}')
        S(f'v_fmac_f32 v13, {f32(0.25)}, v{m[k]}')
    S('v_rsq_f32 v13, v13')
    S('v_sub_f32 v10, v12, v10')
    S('v_mul_f32 v10, v10, v13'); S('v_mov_b32 v11, v10')
    S('v_mov_b32 v12, v13')
    for k in range(14): S(f'v_pk_fma_f32 {vr(X+2*k,2)}, {vr(X+2*k,2)}, v[12:13], v[10:11]')

def gen_k3():
    P = Prog('k3'); S = P.straight()
    red_setup(S, 'k3', WS_P1, [(36, 'x'), (38, 'ws')])
    srd(S, 8, 38, 256*57344, add=WS_P1); srd(S, 12, 36, SZ['x']); srd(S, 16, 38, 6*448*4, add=WS_MOD or None)
    srd(S, 20, 38, 2048*448*4, add=WS_X2); srd(S, 24, 38, 2048*448*2, add=WS_Y)
    red_load(S, 8)
    XR = 100; GA = 116; CB = 144; SB = 172
    S('s_mul_i32 s5, s2, 7168'); S('s_mul_i32 s6, s3, 224'); S('s_add_u32 s5, s5, s6')
    S('v_mul_u32_u24 v8, 896, v5'); S('v_lshl_add_u32 v8, v4, 3, v8')
    for i in range(7): S(f'buffer_load_dwordx2 {vr(XR+2*i,2)}, v8, s[12:15], s5 offen offset:{32*i}')
    S('v_lshlrev_b32 v9, 4, v4')
    S('s_mul_i32 s6, s3, 448')
    for arr, idx in ((GA, 2), (CB, 4), (SB, 3)):
        S(f's_add_u32 s7, s6, {idx*1792}')
        for i in range(7): S(f'buffer_load_dwordx4 {vr(arr+4*i)}, v9, s[16:19], s7 offen offset:{64*i}')
    S('v_lshlrev_b32 v15, 5, v5')
    S('s_lshl_b32 s5, s3, 3')
    S('v_add_u32 v14, s5, v15')
    red_sum(S)
    for d in range(14):
        S(f'v_lshlrev_b32 v10, 16, v{XR+d}')
        S(f'v_and_b32 v11, 0xffff0000, v{XR+d}')
        S(f'v_pk_fma_f32 {vr(AC+2*d,2)}, {vr(AC+2*d,2)}, {vr(GA+2*d,2)}, v[10:11]')
    S('s_mul_i32 s5, s2, 14336'); S('s_mul_i32 s6, s3, 3584'); S('s_add_u32 s5, s5, s6')
    S('v_lshlrev_b32 v8, 4, v2')
    S('s_mov_b32 exec_hi, 0')
    for i in range(7): S(f'buffer_store_dwordx4 {vr(AC+4*i)}, v8, s[20:23], s5 offen offset:{512*i}')
    S('s_mov_b64 exec, -1')
    Y = 200
    for k in range(28): S(f'v_mov_b32 v{Y+k}, v{AC+k}')
    layernorm28(S, Y, 0)
    for k in range(14): S(f'v_pk_fma_f32 {vr(Y+2*k,2)}, {vr(Y+2*k,2)}, {vr(CB+2*k,2)}, {vr(SB+2*k,2)}')
    layernorm28(S, Y, 256)
    for k in range(14): S(f'v_cvt_pk_bf16_f32 v{XR+k}, v{Y+2*k}, v{Y+2*k+1}')
    S('s_lshr_b32 s5, s2, 3'); S('s_mul_i32 s5, s5, 57344')
    S('s_bfe_u32 s6, s2, 0x20001'); S('s_lshl_b32 s6, s6, 10'); S('s_add_u32 s5, s5, s6')
    S('s_and_b32 s6, s2, 1'); S('s_lshl_b32 s6, s6, 7'); S('s_add_u32 s5, s5, s6')
    S('v_lshlrev_b32 v8, 4, v5'); S('v_lshl_add_u32 v8, v4, 8, v8')
    S('s_mul_i32 s6, s3, 12288'); S('s_add_u32 s6, s6, s5')
    S('s_lshr_b32 s7, s3, 1'); S('s_lshl_b32 s7, s7, 12'); S('s_add_u32 s7, s7, s5'); S(f's_add_u32 s7, s7, {12*4096}')
    S('s_and_b32 s28, s3, 1'); S('s_lshl_b32 s28, s28, 3'); S('s_add_u32 s7, s7, s28')
    S('s_mov_b32 exec_hi, 0')
    for ip in range(3):
        S(f'buffer_store_dwordx4 {vr(XR+4*ip)}, v8, s[24:27], s6 offen')
        if ip < 2: S('s_add_u32 s6, s6, 4096')
    S(f'buffer_store_dwordx2 {vr(XR+12,2)}, v8, s[24:27], s7 offen')
    S('s_waitcnt vmcnt(0)') if STAMPS['on'] else None
    stamp(S, 2)
    stamp_flush(S, 3, 2, 3, 38)
    S('L_k3_end:')
    S('s_endpgm')
    return P.finalize(), dict(name='k3_kernel', grid=256, block=256, lds=1024, vgpr=232, sgpr=102, accum=232)

def gen_k5():
    P = Prog('k5'); S = P.straight()
    red_setup(S, 'k5', WS_P2, [(36, 'b2'), (38, 'ws'), (40, 'out')])
    srd(S, 8, 38, 256*57344, add=WS_P2); srd(S, 12, 36, SZ['b2']); srd(S, 16, 38, 6*448*4, add=WS_MOD or None)
    srd(S, 20, 38, 2048*448*4, add=WS_X2); srd(S, 24, 40, SZ['out'])
    red_load(S, 8)
    BR = 100; GB = 116; X2 = 144
    S('s_mul_i32 s6, s3, 224')
    S('v_lshlrev_b32 v8, 3, v4')
    for i in range(7): S(f'buffer_load_dwordx2 {vr(BR+2*i,2)}, v8, s[12:15], s6 offen offset:{32*i}')
    S('v_lshlrev_b32 v9, 4, v4')
    S('s_mul_i32 s7, s3, 448'); S(f's_add_u32 s7, s7, {5*1792}')
    for i in range(7): S(f'buffer_load_dwordx4 {vr(GB+4*i)}, v9, s[16:19], s7 offen offset:{64*i}')
    S('s_mul_i32 s5, s2, 14336'); S('s_mul_i32 s7, s3, 3584'); S('s_add_u32 s5, s5, s7')
    S('v_lshlrev_b32 v12, 4, v2')
    for i in range(7): S(f'buffer_load_dwordx4 {vr(X2+4*i)}, v12, s[20:23], s5 offen offset:{512*i}')
    red_sum(S)
    for d in range(14):
        S(f'v_lshlrev_b32 v10, 16, v{BR+d}')
        S(f'v_and_b32 v11, 0xffff0000, v{BR+d}')
        S(f'v_pk_add_f32 {vr(AC+2*d,2)}, {vr(AC+2*d,2)}, v[10:11]')
        S(f'v_pk_fma_f32 {vr(AC+2*d,2)}, {vr(AC+2*d,2)}, {vr(GB+2*d,2)}, {vr(X2+2*d,2)}')
        S(f'v_cvt_pk_bf16_f32 v{PR+d}, v{AC+2*d}, v{AC+2*d+1}')
    S('s_mul_i32 s5, s2, 7168'); S('s_add_u32 s5, s5, s6')
    S('v_mul_u32_u24 v8, 896, v5'); S('v_lshl_add_u32 v8, v4, 3, v8')
    S('s_mov_b32 exec_hi, 0')
    for i in range(7): S(f'buffer_store_dwordx2 {vr(PR+2*i,2)}, v8, s[24:27], s5 offen offset:{32*i}')
    S('s_waitcnt vmcnt(0)') if STAMPS['on'] else None
    stamp(S, 2)
    stamp_flush(S, 3, 4, 3, 38)
    if OPT.get('amp'):
        (ka, ia), (kb, ib) = OPT['amp']
        S('s_cmp_lg_u32 s2, 0'); S('s_cbranch_scc1 L_k5_end')
        S(f's_add_u32 s8, s38, {WS_DBG + (32 << 20)}'); S('s_addc_u32 s9, s39, 0')
        S(f's_load_dword s10, s[8:9], {ka*256*256 + ia*4}')
        if kb < 4: S(f's_load_dword s11, s[8:9], {kb*256*256 + ib*4}')
        else: S(f's_mov_b32 s11, s{ST0+2*ib}')
        S('s_memrealtime s[12:13]')
        S('s_waitcnt lgkmcnt(0)')
        S('s_sub_u32 s10, s11, s10'); S('s_lshl_b32 s10, s10, 2'); S('s_min_u32 s10, s10, 60000'); S('s_add_u32 s10, s10, s12')
        S('L_amp:'); S('s_memrealtime s[14:15]'); S('s_waitcnt lgkmcnt(0)')
        S('s_sub_u32 s16, s10, s14'); S('s_cmp_gt_i32 s16, 0'); S('s_cbranch_scc1 L_amp')
    S('L_k5_end:')
    S('s_endpgm')
    return P.finalize(), dict(name='k5_kernel', grid=256, block=256, lds=0, vgpr=176, sgpr=102, accum=176)

def k4_map(S):
    if OPT.get('k4map', 2) == 1:
        S(f's_and_b32 s{sG}, s2, 7'); S(f's_lshr_b32 s{sRB}, s2, 3')
    else:
        S(f's_and_b32 s{sG}, s2, 3'); S(f's_lshl_b32 s{sG}, s{sG}, 1')
        S(f's_bfe_u32 s{sRB}, s2, 0x10003'); S(f's_or_b32 s{sG}, s{sG}, s{sRB}')
        S(f's_bfe_u32 s{sRB}, s2, 0x10002'); S(f's_lshl_b32 s{sRB}, s{sRB}, 4')
        S(f's_lshr_b32 s{sT0}, s2, 4'); S(f's_or_b32 s{sRB}, s{sRB}, s{sT0}')

def gen_k4():
    P = Prog('k4'); S = P.straight()
    SY, SW1, SW2, SB1, SP2 = 8, 12, 16, 20, 24
    S('s_cmp_ge_u32 s2, 256')
    S('s_cbranch_scc1 L_k4_end')
    S(f's_load_dwordx4 s[56:59], s[0:1], {KA["w1"]}')
    S(f's_load_dwordx2 s[60:61], s[0:1], {KA["w2"]}')
    S(f's_load_dwordx2 s[62:63], s[0:1], {KA["ws"]}')
    stamp(S, 0)
    k4_map(S)
    LN_, I16, KG = 96, 97, 98
    WV = 100; LT = 107; VO = 108; VO2 = 109; L16 = [110, 111, 112]; RV = [113, 114, 115, 125]
    t0, t1, t2, t3 = 116, 117, 118, 119
    D1 = 120; LA = [121, 122, 123, 124]
    sPB, sG1 = 40, 41
    S(f'v_lshrrev_b32 v{t0}, 6, v0')
    S(f'v_and_b32 v{LN_}, 63, v0')
    S(f'v_readfirstlane_b32 s{sW}, v{t0}')
    S(f'v_and_b32 v{I16}, 15, v0')
    S(f'v_bfe_u32 v{KG}, v0, 4, 2')
    S(f'v_lshlrev_b32 v{L16[0]}, 4, v{LN_}')
    S(f'v_lshrrev_b32 v{t0}, 3, v{LN_}'); S(f'v_and_b32 v{t1}, 7, v{LN_}')
    S(f'v_and_b32 v{t2}, 6, v{t0}'); S(f'v_xor_b32 v{t2}, v{t2}, v{t1}')
    S(f'v_mul_u32_u24 v{D1}, 3584, v{t0}')
    S(f'v_lshl_add_u32 v{D1}, v{t2}, 4, v{D1}')
    S(f's_lshl_b32 s{sT0}, s{sW}, 7')
    S(f'v_add_u32 v{D1}, s{sT0}, v{D1}')
    S(f's_lshl_b32 s{sPB}, s{sW}, 15'); S(f's_add_u32 s{sPB}, s{sPB}, 32768')
    S(f's_mul_i32 s{sG1}, s{sG}, 448')
    S(f's_andn2_b32 s{sG1}, s{sG1}, 127')
    S(f's_add_u32 s{sT0}, s{sT0}, s{sG1}')
    S(f'v_lshlrev_b32 v{t0}, 3, v{KG}')
    sYG, sYL = 47, 48
    S(f's_lshl_b32 s{sYL}, s{sW}, 10')
    S(f's_mul_i32 s{sYG}, s{sRB}, 57344'); S(f's_add_u32 s{sYG}, s{sYG}, s{sYL}')
    S('s_waitcnt lgkmcnt(0)')
    srd(S, SY, 62, 2048*448*2, add=WS_Y)
    def y_dma(lo, hi, tag):
        for k in range(lo, hi):
            S(f's_add_u32 m0, s{sYL}, {k*4096}' if k < 8 else f's_add_u32 m0, s{sPB}, {26624 + (k-8)*1024}')
            S(f's_add_u32 s{sT2}, s{sYG}, {k*4096}')
            S(f'buffer_load_dwordx4 v{L16[0]}, s[{SY}:{SY+3}], s{sT2} offen lds', tag=tag)
    def yaddr(k, qb):
        a = (k*4+qb)*1024 if k < 8 else 32768*(qb+1) + 26624 + (k-8)*1024
        return L16[a // 65536], a % 65536
    def rowbase(k, rg):
        if k < 12: return 112*(k // 3) + 32*(k % 3) + 8*rg
        u = k - 12
        return 224*u + 96 + 8*rg if rg < 2 else 224*u + 208 + 8*(rg - 2)
    def w1_dma(k):
        out = []
        for rg in range(4):
            pre = [f's_add_u32 m0, s{sPB}, {((k+4) % 6)*4096 + rg*1024}', f's_add_u32 s{sT2}, s{sG1}, {rowbase(k, rg)*3584}']
            out.append(dict(pre=pre, t=[f'buffer_load_dwordx4 v{D1}, s[{SW1}:{SW1+3}], s{sT2} offen lds'], post=[], tag=f'w1{k}'))
        return out
    y_dma(0, 4, 'ya')
    srd(S, SB1, 58, SZ['b1'])
    for jj in range(4): S(f'buffer_load_dwordx2 {vr(2+2*jj,2)}, v{t0}, s[{SB1}:{SB1+3}], s{sT0} offen offset:{32*jj}')
    srd(S, SW1, 56, SZ['w1'])
    NPRE = OPT.get('k4pre', 4)
    for k in range(NPRE): emit_groups(S, w1_dma(k))
    y_dma(4, 9, 'yb')
    y_dma(9, 14, 'yc')
    srd(S, SW2, 60, SZ['w2']); srd(S, SP2, 62, 256*57344, add=WS_P2)
    BI = 80
    S(f'v_and_b32 v{t0}, 1, v{KG}'); S(f'v_lshlrev_b32 v{t0}, 2, v{t0}')
    S(f'v_lshrrev_b32 v{t1}, 2, v{I16}'); S(f'v_add_u32 v{t0}, v{t0}, v{t1}')
    S(f'v_lshrrev_b32 v{t1}, 1, v{t0}')
    S(f'v_and_b32 v{t2}, 3, v{I16}'); S(f'v_lshlrev_b32 v{t2}, 3, v{t2}')
    S(f'v_lshl_add_u32 v{t2}, v{t0}, 7, v{t2}')
    S(f'v_lshrrev_b32 v{t3}, 1, v{KG}'); S(f'v_lshl_add_u32 v{t2}, v{t3}, 10, v{t2}')
    S(f'v_add_u32 v{t2}, s{sPB}, v{t2}')
    for jj in range(4):
        S(f'v_xor_b32 v{t3}, {jj}, v{t1}')
        S(f'v_lshl_add_u32 v{LA[jj]}, v{t3}, 5, v{t2}')
    S(f'v_add_u32 v{L16[1]}, 65536, v{L16[0]}'); S(f'v_add_u32 v{L16[2]}, 131072, v{L16[0]}')
    proj_lane_setup(S, LN_, I16, KG, WV, LT, VO, VO2, 896, t0, t1)
    sR = [42, 43, 44, 49]; sWB, sOUT = 45, 46
    for k in range(4): S(f's_add_u32 s{sR[k]}, s{sPB}, {k*7168}')
    for k in range(4): S(f'v_add_u32 v{RV[k]}, s{sR[k]}, v{LT}')
    S(f's_mul_i32 s{sWB}, s{sG}, {224*896}')
    S(f's_mul_i32 s{sOUT}, s{sRB}, {8*57344}')
    S(f's_mul_i32 s{sT1}, s{sG}, 7168'); S(f's_add_u32 s{sOUT}, s{sOUT}, s{sT1}')
    S(f's_mul_i32 s{sT1}, s{sW}, 1792'); S(f's_add_u32 s{sOUT}, s{sOUT}, s{sT1}')
    for jj in range(4):
        S(f'v_lshlrev_b32 v{BI+4*jj}, 16, v{2+2*jj}'); S(f'v_and_b32 v{BI+4*jj+1}, 0xffff0000, v{2+2*jj}')
        S(f'v_lshlrev_b32 v{BI+4*jj+2}, 16, v{3+2*jj}'); S(f'v_and_b32 v{BI+4*jj+3}, 0xffff0000, v{3+2*jj}')
    S.waittag('ya')
    S('s_barrier')
    stamp(S, 1)
    ACC = 128; BF = 192; AF = 48
    def afr(n): return AF + 4*(n % 8)
    def bfr(k, qb): return BF + ((k % 3)*4 + qb)*4
    def a_reads(n):
        k, jj = n // 4, n % 4
        out = []
        if jj == 0: out.append(dict(waittag=f'w1{k}'))
        o = ((k+4) % 6)*4096
        out.append(dict(t=f'ds_read_b64_tr_b16 {vr(afr(n),2)}, v{LA[jj]} offset:{o}'))
        out.append(dict(t=f'ds_read_b64_tr_b16 {vr(afr(n)+2,2)}, v{LA[jj]} offset:{o+2048}'))
        return out
    def b_read(k, qb):
        a, o = yaddr(k, qb)
        return f'ds_read_b128 {vr(bfr(k,qb))}, v{a} offset:{o}'
    AH = 6
    for qb in range(4): S(b_read(0, qb))
    for n in range(AH):
        for f in a_reads(n):
            if 'waittag' in f: S.waittag(f['waittag'])
            else: S(f['t'])
    for qb in range(4): S(b_read(1, qb))
    def w2_dma(k):
        out = []
        for n in range(7):
            pre = [f's_add_u32 m0, s{sR[k]}, {n*1024}']
            if n == 0: pre.append(f's_add_u32 s{sT2}, s{sWB}, {k*32*896}')
            out.append(dict(pre=pre, t=[f'buffer_load_dwordx4 v{WV+n}, s[{SW2}:{SW2+3}], s{sT2} offen lds'], post=[], tag=f'w2{k}'))
        return out
    m = []; F = []
    for n in range(56):
        k, jj = n // 4, n % 4
        for qb in range(4):
            acc = vr(ACC + (jj*4+qb)*4)
            m.append(f'{MF} {acc}, {vr(afr(n))}, {vr(bfr(k,qb))}, {acc if k else vr(BI+4*jj)}')
        if n + AH < 56:
            for f in a_reads(n + AH):
                f.update(lo=n*4, c=1, chain='rd'); F.append(f)
        if k + 2 < 14:
            if jj == 0 and k + 2 in (4, 9):
                F.append(dict(waittag='yb' if k + 2 == 4 else 'yc', lo=n*4+1, c=1, chain='rd'))
                F.append(dict(t='s_barrier', lo=n*4+1, c=1, chain='rd'))
                if STAMPS['on']:
                    ix = 6 if k + 2 == 4 else 8
                    F.insert(len(F)-2, dict(t=f's_memrealtime s[{ST0+2*ix}:{ST0+2*ix+1}]', lo=n*4+1, c=0, chain='rd'))
                    F.append(dict(t=f's_memrealtime s[{ST0+2*ix+2}:{ST0+2*ix+3}]', lo=n*4+1, c=0, chain='rd'))
            F.append(dict(t=b_read(k+2, jj), lo=n*4 + 2, c=1, chain='rd'))
    for k in range(NPRE - 6, 8):
        for i, gr in enumerate(w1_dma(k + 6)):
            g = max((k + 1)*16 + 4*i + 2, 2*((k + 6 - NPRE)*4 + i) + 1)
            F.append(dict(t=gr['pre'], lo=g-1, c=1, chain='dma'))
            F.append(dict(t=gr['t'], lo=g, c=2, tag=gr['tag'], chain='dma'))
    for kk, after in (((0, 9), (1, 11)) if OPT.get('k4w2early') else ((0, 11),)):
        for i, gr in enumerate(w2_dma(kk)):
            g = (after + 1)*16 + 4*i + 2
            F.append(dict(t=gr['pre'], lo=g-1, c=1, chain='dma'))
            F.append(dict(t=gr['t'], lo=g, c=2, tag=gr['tag'], chain='dma'))
    F.sort(key=lambda f: f['lo'])
    interleave(S, m, F, cap=3)
    S('s_barrier')
    stamp(S, 2)
    K0 = -2.0 * 0.7978845608028654 * 1.4426950408889634
    K1 = K0 * 0.044715
    G = Seq()
    G(f'v_mov_b32 v2, {f32(K1)}'); G(f'v_mov_b32 v3, {f32(K1)}'); G(f'v_mov_b32 v4, {f32(K0)}'); G(f'v_mov_b32 v5, {f32(K0)}')
    G('v_mov_b32 v6, 1.0'); G('v_mov_b32 v7, 1.0')
    G(f's_lshl_b32 s{sT1}, s{sW}, 13')
    G(f'v_add_u32 v{t2}, s{sT1}, v{L16[0]}')
    G(f's_and_b32 s{sT1}, s{sG}, 1'); G(f's_lshl_b32 s{sT1}, s{sT1}, 12')
    G(f'v_add_u32 v{t3}, s{sT1}, v{L16[0]}')
    n = 0
    for u in range(2):
        for qb in range(4):
            T = 16 + 16*(n % 4); n += 1
            src = [ACC + ((2*u + e // 2)*4 + qb)*4 + 2*(e % 2) for e in range(4)]
            for e in range(4): G(f'v_pk_mul_f32 {vr(T+2*e,2)}, {vr(src[e],2)}, {vr(src[e],2)}')
            for e in range(4): G(f'v_pk_fma_f32 {vr(T+2*e,2)}, {vr(T+2*e,2)}, v[2:3], v[4:5]')
            for e in range(4): G(f'v_pk_mul_f32 {vr(T+2*e,2)}, {vr(T+2*e,2)}, {vr(src[e],2)}')
            for e in range(8): G(f'v_exp_f32 v{T+e}, v{T+e}')
            for e in range(4): G(f'v_pk_add_f32 {vr(T+2*e,2)}, {vr(T+2*e,2)}, v[6:7]')
            for e in range(8): G(f'v_rcp_f32 v{T+e}, v{T+e}')
            for e in range(4): G(f'v_pk_mul_f32 {vr(T+2*e,2)}, {vr(T+2*e,2)}, {vr(src[e],2)}')
            for e in range(4): G(f'v_cvt_pk_bf16_f32 v{T+8+e}, v{T+2*e}, v{T+2*e+1}')
            G(f'ds_write_b128 v{t2}, {vr(T+8)} offset:{(u*4+qb)*1024}')
    merge_into(S, G, ([] if OPT.get('k4w2early') else w2_dma(1)) + w2_dma(2) + w2_dma(3), every=10, start=4)
    S('s_waitcnt lgkmcnt(0)')
    S('s_barrier')
    stamp(S, 3)
    proj_out(S, 7, lambda k, qb: (t3, (k*4+qb)*1024), SW2, sWB, 896, sR, RV, WV, 128, SP2, sOUT, VO, VO2, 4, 'w2', stamp_idx=4)
    if STAMPS['on']: S('s_waitcnt vmcnt(0)')
    stamp(S, 5)
    stamp_flush(S, 10, 3, sW, 62)
    S('L_k4_end:')
    S('s_endpgm')
    return P.finalize(), dict(name='k4_kernel', grid=256, block=256, lds=163840, vgpr=256, sgpr=102, accum=256)

def gen_all():
    return [gen_k3(), gen_k4(), gen_k5()]
```

```python
from k2e import *

CO = 'sc0 sc1'
SFL = 72
SPIN_MAX = 1 << 16

def publish(S, k, VZ, VONE):
    S('s_waitcnt vmcnt(0)')
    S('s_barrier')
    S(f's_cmp_lg_u32 s{sW}, 0')
    S(f's_cbranch_scc1 L_pub{k}')
    S(f's_lshl_b32 s{sT0}, s{sRB}, 7'); S(f's_lshl_b32 s{sT1}, s{sG}, 2'); S(f's_add_u32 s{sT0}, s{sT0}, s{sT1}')
    S(f'v_mov_b32 v{VZ}, 0'); S(f'v_mov_b32 v{VONE}, 1')
    S('s_mov_b64 exec, 1')
    S(f'buffer_store_dword v{VONE}, v{VZ}, s[{SFL}:{SFL+3}], s{sT0} offen offset:{k*4096 % 4096} {CO}' if False else
      f's_add_u32 s{sT0}, s{sT0}, {k*4096}')
    S(f'buffer_store_dword v{VONE}, v{VZ}, s[{SFL}:{SFL+3}], s{sT0} offen {CO}')
    S('s_mov_b64 exec, -1')
    S(f'L_pub{k}:')

def await_flags(P, S, k, VA, VD):
    S(f's_cmp_eq_u32 s{sW}, 0')
    S(f's_cbranch_scc1 L_poll{k}')
    S(f'L_polled{k}:')
    S('s_barrier')
    X = P.outofline()
    X(f'L_poll{k}:')
    X(f's_lshl_b32 s{sT0}, s{sRB}, 7'); X(f's_add_u32 s{sT0}, s{sT0}, {k*4096}')
    X(f's_mov_b32 s{sT1}, {SPIN_MAX}')
    X(f'L_poll{k}_l:')
    X(f'buffer_load_dword v{VD}, v{VA}, s[{SFL}:{SFL+3}], s{sT0} offen {CO}')
    X('s_waitcnt vmcnt(0)')
    X(f'v_cmp_ne_u32 vcc, 1, v{VD}')
    X(f's_cbranch_vccz L_polled{k}')
    X('s_sleep 1')
    X(f's_sub_u32 s{sT1}, s{sT1}, 1')
    X(f's_cmp_lg_u32 s{sT1}, 0')
    X(f's_cbranch_scc1 L_poll{k}_l')
    X(f's_branch L_polled{k}')

def gen_tail(P, S, R):
    LN_, I16, KG, WV, LT, VO, VO2, L16 = R['LN_'], R['I16'], R['KG'], R['WV'], R['LT'], R['VO'], R['VO2'], R['L16']
    SW1, SW2 = SX, SWQ
    SXX, SMD, SB_, SY, SP2 = 12, 16, 24, 28, 76
    sOUT = R['sOUT']
    Q8, K8, GH, PA, PB, XA, MA, FA, STW, STR, MSK = 2, 3, 4, 5, 6, 7, 8, 9, 10, 11, 12
    t0, t1, t2, t3 = 56, 57, 58, 59
    PR, AC = 64, 40
    XR, GA, CB, SBv = 128, 136, 152, 168
    X2 = 240
    sRG, sPO, sPB, sG1, sYG, sYL = 47, 48, 49, 50, 51, 52
    sRr = [40, 41, 42, 43]; sWB2 = 44
    D1 = 60; LA = [61, 62, 63, 1]; RV = [33, 34, 35, 36]; HB = 37
    S(f's_load_dwordx2 s[{sPTR+2}:{sPTR+3}], s[0:1], {KA["b1"]}')
    S(f's_load_dwordx2 s[{sPTR+4}:{sPTR+5}], s[0:1], {KA["b2"]}')
    S(f's_load_dwordx2 s[{sPTR+6}:{sPTR+7}], s[0:1], {KA["out"]}')
    srd(S, SFL, sPTR+10, 3*4096, add=WS_FL)
    srd(S, SXX, sPTR, SZ['x']); srd(S, SMD, sPTR+10, 6*448*4, add=WS_MOD or None)
    srd(S, SY, sPTR+10, 2048*448*2, add=WS_Y); srd(S, SP2, sPTR+10, 256*57344, add=WS_P2)
    S(f'v_and_b32 v{Q8}, 7, v{LN_}'); S(f'v_bfe_u32 v{K8}, v{LN_}, 3, 2'); S(f'v_lshrrev_b32 v{GH}, 5, v{LN_}')
    S(f'v_and_b32 v{t0}, 31, v{LN_}')
    S(f'v_lshlrev_b32 v{t1}, 4, v{t0}')
    S(f'v_lshl_add_u32 v{PA}, v{GH}, 10, v{t1}')
    S(f'v_add_u32 v{t1}, 512, v{t1}')
    S(f'v_lshlrev_b32 v{t2}, 3, v{t0}'); S(f'v_add_u32 v{t2}, 1536, v{t2}')
    S(f'v_cmp_eq_u32 vcc, 0, v{GH}')
    S(f'v_cndmask_b32 v{PB}, v{t2}, v{t1}, vcc')
    S(f'v_cndmask_b32 v{MSK}, 0, 1.0, vcc'); S(f'v_mov_b32 v{MSK+1}, v{MSK}')
    S(f'v_mul_u32_u24 v{XA}, 896, v{Q8}'); S(f'v_lshl_add_u32 v{XA}, v{K8}, 3, v{XA}'); S(f'v_lshl_add_u32 v{XA}, v{GH}, 7, v{XA}')
    S(f'v_lshlrev_b32 v{MA}, 4, v{K8}'); S(f'v_lshl_add_u32 v{MA}, v{GH}, 8, v{MA}')
    S(f'v_lshlrev_b32 v{FA}, 2, v{Q8}')
    S(f'v_lshlrev_b32 v{STR}, 5, v{Q8}'); S(f's_lshl_b32 s{sT0}, s{sW}, 3'); S(f'v_add_u32 v{STW}, s{sT0}, v{STR}')
    S(f's_lshl_b32 s{sRG}, s{sRB}, 3'); S(f's_add_u32 s{sRG}, s{sRG}, s{sG}')
    S(f's_mul_i32 s{sPO}, s{sRG}, 57344'); S(f's_mul_i32 s{sT0}, s{sW}, 1792'); S(f's_add_u32 s{sPO}, s{sPO}, s{sT0}')
    S(f's_lshl_b32 s{sPB}, s{sW}, 15'); S(f's_add_u32 s{sPB}, s{sPB}, 32768')
    S(f's_mul_i32 s{sG1}, s{sG}, 448'); S(f's_andn2_b32 s{sG1}, s{sG1}, 127')
    S(f's_lshl_b32 s{sYL}, s{sW}, 10')
    S(f's_mul_i32 s{sYG}, s{sRB}, 57344'); S(f's_add_u32 s{sYG}, s{sYG}, s{sYL}')
    S(f'v_lshrrev_b32 v{t0}, 3, v{LN_}')
    S(f'v_and_b32 v{t2}, 6, v{t0}'); S(f'v_xor_b32 v{t2}, v{t2}, v{Q8}')
    S(f'v_mul_u32_u24 v{D1}, 3584, v{t0}'); S(f'v_lshl_add_u32 v{D1}, v{t2}, 4, v{D1}')
    S(f's_lshl_b32 s{sT0}, s{sW}, 7'); S(f'v_add_u32 v{D1}, s{sT0}, v{D1}')
    S(f'v_and_b32 v{t0}, 1, v{KG}'); S(f'v_lshlrev_b32 v{t0}, 2, v{t0}')
    S(f'v_lshrrev_b32 v{t1}, 2, v{I16}'); S(f'v_add_u32 v{t0}, v{t0}, v{t1}')
    S(f'v_lshrrev_b32 v{t1}, 1, v{t0}')
    S(f'v_and_b32 v{t2}, 3, v{I16}'); S(f'v_lshlrev_b32 v{t2}, 3, v{t2}')
    S(f'v_lshl_add_u32 v{t2}, v{t0}, 7, v{t2}')
    S(f'v_lshrrev_b32 v{t3}, 1, v{KG}'); S(f'v_lshl_add_u32 v{t2}, v{t3}, 10, v{t2}')
    S(f'v_add_u32 v{t2}, s{sPB}, v{t2}')
    for jj in range(4):
        S(f'v_xor_b32 v{t3}, {jj}, v{t1}')
        S(f'v_lshl_add_u32 v{LA[jj]}, v{t3}, 5, v{t2}')
    S(f'v_add_u32 v{L16[2]}, 131072, v{L16[0]}')
    for k in range(4): S(f's_add_u32 s{sRr[k]}, s{sPB}, {k*7168}')
    for k in range(4): S(f'v_add_u32 v{RV[k]}, s{sRr[k]}, v{LT}')
    S(f's_mul_i32 s{sWB2}, s{sG}, {224*896}')
    S(f's_and_b32 s{sT0}, s{sG}, 1'); S(f's_lshl_b32 s{sT0}, s{sT0}, 12'); S(f'v_add_u32 v{HB}, s{sT0}, v{L16[0]}')
    S('s_waitcnt lgkmcnt(0)')
    srd(S, SB_, sPTR+2, SZ['b1'])
    publish(S, 0, t0, t1)
    stamp(S, 9)
    S(f's_mul_i32 s{sT2}, s{sRG}, 7168'); S(f's_mul_i32 s{sT3}, s{sW}, 224'); S(f's_add_u32 s{sT2}, s{sT2}, s{sT3}')
    for i in range(4): S(f'buffer_load_dwordx2 {vr(XR+2*i,2)}, v{XA}, s[{SXX}:{SXX+3}], s{sT2} offen offset:{32*i}')
    S(f's_mul_i32 s{sT3}, s{sW}, 448')
    for arr, idx in ((GA, 2), (CB, 4), (SBv, 3)):
        S(f's_add_u32 s{sT2}, s{sT3}, {idx*1792}')
        for i in range(4): S(f'buffer_load_dwordx4 {vr(arr+4*i)}, v{MA}, s[{SMD}:{SMD+3}], s{sT2} offen offset:{64*i} {MODCO()}')
    BRAW = 184
    S(f's_lshl_b32 s{sT2}, s{sW}, 7'); S(f's_add_u32 s{sT2}, s{sT2}, s{sG1}')
    S(f'v_lshlrev_b32 v{t0}, 3, v{KG}')
    for jj in range(4): S(f'buffer_load_dwordx2 {vr(BRAW+2*jj,2)}, v{t0}, s[{SB_}:{SB_+3}], s{sT2} offen offset:{32*jj}')
    def rowbase(k, rg):
        if k < 12: return 112*(k // 3) + 32*(k % 3) + 8*rg
        u = k - 12
        return 224*u + 96 + 8*rg if rg < 2 else 224*u + 208 + 8*(rg - 2)
    def w1_dma(k):
        out = []
        for rg in range(4):
            pre = [f's_add_u32 m0, s{sPB}, {((k+4) % 6)*4096 + rg*1024}', f's_add_u32 s{sT2}, s{sG1}, {rowbase(k, rg)*3584}']
            out.append(dict(pre=pre, t=[f'buffer_load_dwordx4 v{D1}, s[{SW1}:{SW1+3}], s{sT2} offen lds'], post=[], tag=f'w1{k}'))
        return out
    for k in range(6): emit_groups(S, w1_dma(k))
    S(f'v_mov_b32 v{t2}, 0x00003f80'); S(f'v_mov_b32 v{t3}, 0x3f800000')
    def reduce_partials(srdp, k):
        await_flags(P, S, k, FA, t0)
        for g in range(8):
            S(f's_add_u32 s{sT2}, s{sPO}, {g*7168}')
            S(f'buffer_load_dwordx4 {vr(PR+8*g)}, v{PA}, s[{srdp}:{srdp+3}], s{sT2} offen {CO}')
            S(f'buffer_load_dwordx4 {vr(PR+8*g+4)}, v{PB}, s[{srdp}:{srdp+3}], s{sT2} offen {CO}')
        for d in range(8):
            S(f'v_lshlrev_b32 v{AC+2*d}, 16, v{PR+d}'); S(f'v_and_b32 v{AC+2*d+1}, 0xffff0000, v{PR+d}')
        for g in range(1, 8):
            for d in range(8):
                if OPT.get('dot2', 1):
                    S(f'v_dot2c_f32_bf16 v{AC+2*d}, v{PR+8*g+d}, v{t2}')
                    S(f'v_dot2c_f32_bf16 v{AC+2*d+1}, v{PR+8*g+d}, v{t3}')
                else:
                    S(f'v_lshlrev_b32 v14, 16, v{PR+8*g+d}'); S(f'v_and_b32 v15, 0xffff0000, v{PR+8*g+d}')
                    S(f'v_pk_add_f32 {vr(AC+2*d,2)}, {vr(AC+2*d,2)}, v[14:15]')
        S('s_nop 2')
    def red3(x, t):
        S(f'v_add_f32_dpp v{x}, v{x}, v{x} row_ror:8 row_mask:0xf bank_mask:0xf')
        allreduce_kg(S, x, t, 'v_add_f32')
    def layernorm16(X, off):
        a, b, m, q = 14, 15, PR+8, PR+9
        for k in (6, 7): S(f'v_pk_mul_f32 {vr(X+2*k,2)}, {vr(X+2*k,2)}, {vr(MSK,2)}')
        S(f'v_pk_add_f32 v[14:15], {vr(X,2)}, {vr(X+2,2)}')
        for k in range(2, 8): S(f'v_pk_add_f32 v[14:15], v[14:15], {vr(X+2*k,2)}')
        S('v_add_f32 v14, v14, v15')
        red3(14, 15)
        S(f'v_mul_f32 v{m}, {f32(1.0/112)}, v14')
        S(f'v_sub_f32 v14, 0, v{m}'); S(f'v_sub_f32 v15, 0, v{m}')
        for k in range(8): S(f'v_pk_add_f32 {vr(X+2*k,2)}, {vr(X+2*k,2)}, v[14:15]')
        for k in (6, 7): S(f'v_pk_mul_f32 {vr(X+2*k,2)}, {vr(X+2*k,2)}, {vr(MSK,2)}')
        S(f'v_pk_mul_f32 v[14:15], {vr(X,2)}, {vr(X,2)}')
        for k in range(1, 8): S(f'v_pk_fma_f32 v[14:15], {vr(X+2*k,2)}, {vr(X+2*k,2)}, v[14:15]')
        S(f'v_add_f32 v{q}, v14, v15')
        red3(q, 15)
        S(f'ds_write_b64 v{STW}, {vr(m,2)} offset:{off}')
        S('s_waitcnt lgkmcnt(0)')
        S('s_barrier')
        S(f'ds_read_b128 {vr(PR)}, v{STR} offset:{off}')
        S(f'ds_read_b128 {vr(PR+4)}, v{STR} offset:{off+16}')
        mm = [PR, PR+2, PR+4, PR+6]; qq = [PR+1, PR+3, PR+5, PR+7]
        S(f'v_add_f32 v14, v{mm[0]}, v{mm[1]}'); S(f'v_add_f32 v15, v{mm[2]}, v{mm[3]}')
        S('v_add_f32 v14, v14, v15'); S(f'v_mul_f32 v14, {f32(0.25)}, v14')
        S(f'v_add_f32 v15, v{qq[0]}, v{qq[1]}'); S(f'v_add_f32 v15, v15, v{qq[2]}'); S(f'v_add_f32 v15, v15, v{qq[3]}')
        S(f'v_mov_b32 v{PR+11}, {f32(1e-5)}')
        S(f'v_fmac_f32 v{PR+11}, {f32(1.0/448)}, v15')
        for k in range(4):
            S(f'v_sub_f32 v{mm[k]}, v{mm[k]}, v14')
            S(f'v_mul_f32 v{mm[k]}, v{mm[k]}, v{mm[k]}')
            S(f'v_fmac_f32 v{PR+11}, {f32(0.25)}, v{mm[k]}')
        S(f'v_rsq_f32 v{PR+11}, v{PR+11}')
        S(f'v_sub_f32 v14, v{m}, v14')
        S(f'v_mul_f32 v14, v14, v{PR+11}'); S('v_mov_b32 v15, v14')
        S(f'v_mov_b32 v{PR+10}, v{PR+11}')
        for k in range(8): S(f'v_pk_fma_f32 {vr(X+2*k,2)}, {vr(X+2*k,2)}, {vr(PR+10,2)}, v[14:15]')
    reduce_partials(SP1, 0)
    stamp(S, 10)
    S(f'v_cmp_eq_u32 vcc, 0, v{GH}')
    for e in range(12, 16): S(f'v_cndmask_b32 v{AC+e}, 0, v{AC+e}, vcc')
    for d in range(8):
        S(f'v_lshlrev_b32 v14, 16, v{XR+d}'); S(f'v_and_b32 v15, 0xffff0000, v{XR+d}')
        S(f'v_pk_fma_f32 {vr(AC+2*d,2)}, {vr(AC+2*d,2)}, {vr(GA+2*d,2)}, v[14:15]')
        S(f'v_pk_mul_f32 {vr(X2+2*d,2)}, {vr(AC+2*d,2)}, 1.0 op_sel_hi:[1,0]')
    layernorm16(AC, 0)
    for k in range(8): S(f'v_pk_fma_f32 {vr(AC+2*k,2)}, {vr(AC+2*k,2)}, {vr(CB+2*k,2)}, {vr(SBv+2*k,2)}')
    YA, YB = XR, XR+1
    S(f's_mul_i32 s{sT2}, s{sRB}, 57344')
    S(f's_lshr_b32 s{sT3}, s{sG}, 1'); S(f's_lshl_b32 s{sT3}, s{sT3}, 10'); S(f's_add_u32 s{sT2}, s{sT2}, s{sT3}')
    S(f's_and_b32 s{sT3}, s{sG}, 1'); S(f's_lshl_b32 s{sT3}, s{sT3}, 7'); S(f's_add_u32 s{sT2}, s{sT2}, s{sT3}')
    S(f'v_lshlrev_b32 v{YB}, 4, v{Q8}'); S(f'v_lshl_add_u32 v{YB}, v{K8}, 8, v{YB}')
    S(f'v_lshl_add_u32 v{YA}, v{GH}, 13, v{YB}')
    S(f's_mul_i32 s{sT0}, s{sW}, 12288'); S(f's_add_u32 s{sT0}, s{sT0}, s{sT2}')
    S(f's_add_u32 s{sT1}, s{sT0}, 4096')
    S(f's_lshr_b32 s{sT3}, s{sW}, 1'); S(f's_lshl_b32 s{sT3}, s{sT3}, 12'); S(f's_add_u32 s{sT2}, s{sT2}, s{sT3}')
    S(f's_lshl_b32 s{sT3}, s{sS}, 3'); S(f's_add_u32 s{sT2}, s{sT2}, s{sT3}'); S(f's_add_u32 s{sT2}, s{sT2}, {12*4096}')
    layernorm16(AC, 256)
    YP = GA
    for k in range(8): S(f'v_cvt_pk_bf16_f32 v{YP+k}, v{AC+2*k}, v{AC+2*k+1}')
    S(f'buffer_store_dwordx4 {vr(YP)}, v{YA}, s[{SY}:{SY+3}], s{sT0} offen {CO}')
    S('s_mov_b32 exec_hi, 0')
    S(f'buffer_store_dwordx4 {vr(YP+4)}, v{YB}, s[{SY}:{SY+3}], s{sT1} offen {CO}')
    S('s_mov_b32 exec_hi, -1'); S('s_mov_b32 exec_lo, 0')
    S(f'buffer_store_dwordx2 {vr(YP+4,2)}, v{YB}, s[{SY}:{SY+3}], s{sT2} offen {CO}')
    S('s_mov_b64 exec, -1')
    BI = 40
    for jj in range(4):
        S(f'v_lshlrev_b32 v{BI+4*jj}, 16, v{BRAW+2*jj}'); S(f'v_and_b32 v{BI+4*jj+1}, 0xffff0000, v{BRAW+2*jj}')
        S(f'v_lshlrev_b32 v{BI+4*jj+2}, 16, v{BRAW+1+2*jj}'); S(f'v_and_b32 v{BI+4*jj+3}, 0xffff0000, v{BRAW+1+2*jj}')
    publish(S, 1, t0, t1)
    stamp(S, 0)
    await_flags(P, S, 1, FA, t0)
    YS = 64
    for k in range(14):
        S(f's_add_u32 s{sT2}, s{sYG}, {k*4096}')
        S(f'buffer_load_dwordx4 {vr(YS+4*k)}, v{L16[0]}, s[{SY}:{SY+3}], s{sT2} offen {CO}')
    S(f'v_add_u32 v{t0}, s{sYL}, v{L16[0]}')
    S(f'v_add_u32 v{t1}, s{sPB}, v{L16[0]}')
    for k in range(14):
        S(f'ds_write_b128 v{t0}, {vr(YS+4*k)} offset:{k*4096}' if k < 8 else f'ds_write_b128 v{t1}, {vr(YS+4*k)} offset:{26624 + (k-8)*1024}')
    def yaddr(k, qb):
        a = (k*4+qb)*1024 if k < 8 else 32768*(qb+1) + 26624 + (k-8)*1024
        return L16[a // 65536], a % 65536
    S('s_waitcnt lgkmcnt(0)')
    S('s_barrier')
    stamp(S, 1)
    ACC = 128; BF = 192; AF = 96
    def afr(n): return AF + 4*(n % 8)
    def bfr(k, qb): return BF + ((k % 3)*4 + qb)*4
    def a_reads(n):
        k, jj = n // 4, n % 4
        out = []
        if jj == 0: out.append(dict(waittag=f'w1{k}'))
        o = ((k+4) % 6)*4096
        out.append(dict(t=f'ds_read_b64_tr_b16 {vr(afr(n),2)}, v{LA[jj]} offset:{o}'))
        out.append(dict(t=f'ds_read_b64_tr_b16 {vr(afr(n)+2,2)}, v{LA[jj]} offset:{o+2048}'))
        return out
    def b_read(k, qb):
        a, o = yaddr(k, qb)
        return f'ds_read_b128 {vr(bfr(k,qb))}, v{a} offset:{o}'
    AH = 6
    for qb in range(4): S(b_read(0, qb))
    for n in range(AH):
        for f in a_reads(n):
            if 'waittag' in f: S.waittag(f['waittag'])
            else: S(f['t'])
    for qb in range(4): S(b_read(1, qb))
    def w2_dma(k):
        out = []
        for n in range(7):
            pre = [f's_add_u32 m0, s{sRr[k]}, {n*1024}']
            if n == 0: pre.append(f's_add_u32 s{sT2}, s{sWB2}, {k*32*896}')
            out.append(dict(pre=pre, t=[f'buffer_load_dwordx4 v{WV+n}, s[{SW2}:{SW2+3}], s{sT2} offen lds'], post=[], tag=f'w2{k}'))
        return out
    m = []; F = []
    for n in range(56):
        k, jj = n // 4, n % 4
        for qb in range(4):
            acc = vr(ACC + (jj*4+qb)*4)
            m.append(f'{MF} {acc}, {vr(afr(n))}, {vr(bfr(k,qb))}, {acc if k else vr(BI+4*jj)}')
        if n + AH < 56:
            for f in a_reads(n + AH):
                f.update(lo=n*4, c=1, chain='rd'); F.append(f)
        if k + 2 < 14: F.append(dict(t=b_read(k+2, jj), lo=n*4 + 2, c=1, chain='rd'))
    for k in range(8):
        for i, gr in enumerate(w1_dma(k + 6)):
            g = (k + 1)*16 + 4*i + 2
            F.append(dict(t=gr['pre'], lo=g-1, c=1, chain='dma'))
            F.append(dict(t=gr['t'], lo=g, c=2, tag=gr['tag'], chain='dma'))
    for kk, after in ((0, 9), (1, 11)):
        for i, gr in enumerate(w2_dma(kk)):
            g = (after + 1)*16 + 4*i + 2
            F.append(dict(t=gr['pre'], lo=g-1, c=1, chain='dma'))
            F.append(dict(t=gr['t'], lo=g, c=2, tag=gr['tag'], chain='dma'))
    F.sort(key=lambda f: f['lo'])
    interleave(S, m, F, cap=3)
    S('s_barrier')
    stamp(S, 2)
    K0 = -2.0 * 0.7978845608028654 * 1.4426950408889634
    K1 = K0 * 0.044715
    C = 40
    G = Seq()
    G(f'v_mov_b32 v{C}, {f32(K1)}'); G(f'v_mov_b32 v{C+1}, {f32(K1)}'); G(f'v_mov_b32 v{C+2}, {f32(K0)}'); G(f'v_mov_b32 v{C+3}, {f32(K0)}')
    G(f'v_mov_b32 v{C+4}, 1.0'); G(f'v_mov_b32 v{C+5}, 1.0')
    G(f's_lshl_b32 s{sT1}, s{sW}, 13')
    G(f'v_add_u32 v{t0}, s{sT1}, v{L16[0]}')
    n = 0
    for u in range(2):
        for qb in range(4):
            T = 64 + 16*(n % 4); n += 1
            src = [ACC + ((2*u + e // 2)*4 + qb)*4 + 2*(e % 2) for e in range(4)]
            for e in range(4): G(f'v_pk_mul_f32 {vr(T+2*e,2)}, {vr(src[e],2)}, {vr(src[e],2)}')
            for e in range(4): G(f'v_pk_fma_f32 {vr(T+2*e,2)}, {vr(T+2*e,2)}, {vr(C,2)}, {vr(C+2,2)}')
            for e in range(4): G(f'v_pk_mul_f32 {vr(T+2*e,2)}, {vr(T+2*e,2)}, {vr(src[e],2)}')
            for e in range(8): G(f'v_exp_f32 v{T+e}, v{T+e}')
            for e in range(4): G(f'v_pk_add_f32 {vr(T+2*e,2)}, {vr(T+2*e,2)}, {vr(C+4,2)}')
            for e in range(8): G(f'v_rcp_f32 v{T+e}, v{T+e}')
            for e in range(4): G(f'v_pk_mul_f32 {vr(T+2*e,2)}, {vr(T+2*e,2)}, {vr(src[e],2)}')
            for e in range(4): G(f'v_cvt_pk_bf16_f32 v{T+8+e}, v{T+2*e}, v{T+2*e+1}')
            G(f'ds_write_b128 v{t0}, {vr(T+8)} offset:{(u*4+qb)*1024}')
    merge_into(S, G, w2_dma(2) + w2_dma(3), every=12, start=4)
    S('s_waitcnt lgkmcnt(0)')
    S('s_barrier')
    stamp(S, 3)
    proj_out(S, 7, lambda k, qb: (HB, (k*4+qb)*1024), SW2, sWB2, 896, sRr, RV, WV, 128, SP2, sOUT, VO, VO2, 4, 'w2',
             BF=64, AF=96, stamp_idx=4)
    srd(S, SB_, sPTR+4, SZ['b2']); srd(S, SXX, sPTR+6, SZ['out'])
    publish(S, 2, t0, t1)
    stamp(S, 5)
    B2, GB = 128, 136
    S(f's_mul_i32 s{sT3}, s{sW}, 224')
    S(f'v_lshlrev_b32 v{t0}, 3, v{K8}'); S(f'v_lshl_add_u32 v{t0}, v{GH}, 7, v{t0}')
    for i in range(4): S(f'buffer_load_dwordx2 {vr(B2+2*i,2)}, v{t0}, s[{SB_}:{SB_+3}], s{sT3} offen offset:{32*i}')
    S(f's_mul_i32 s{sT2}, s{sW}, 448'); S(f's_add_u32 s{sT2}, s{sT2}, {5*1792}')
    for i in range(4): S(f'buffer_load_dwordx4 {vr(GB+4*i)}, v{MA}, s[{SMD}:{SMD+3}], s{sT2} offen offset:{64*i} {MODCO()}')
    S(f'v_mov_b32 v{t2}, 0x00003f80'); S(f'v_mov_b32 v{t3}, 0x3f800000')
    reduce_partials(SP2, 2)
    for d in range(8):
        S(f'v_lshlrev_b32 v14, 16, v{B2+d}'); S(f'v_and_b32 v15, 0xffff0000, v{B2+d}')
        S(f'v_pk_add_f32 {vr(AC+2*d,2)}, {vr(AC+2*d,2)}, v[14:15]')
        S(f'v_pk_fma_f32 {vr(AC+2*d,2)}, {vr(AC+2*d,2)}, {vr(GB+2*d,2)}, {vr(X2+2*d,2)}')
        S(f'v_cvt_pk_bf16_f32 v{PR+d}, v{AC+2*d}, v{AC+2*d+1}')
    S(f's_mul_i32 s{sT2}, s{sRG}, 7168'); S(f's_add_u32 s{sT2}, s{sT2}, s{sT3}')
    for i in range(4):
        if i == 3: S('s_mov_b32 exec_hi, 0')
        S(f'buffer_store_dwordx2 {vr(PR+2*i,2)}, v{XA}, s[{SXX}:{SXX+3}], s{sT2} offen offset:{32*i}')

def MODCO(): return CO if OPT.get('front') else ''
```

```python
import re

REG_RE = re.compile(r'\b([vas])\[(\d+):(\d+)\]|\b([vas])(\d+)\b|\b(vcc|m0|exec|scc)\b')

def regs_of(op):
    out = []
    for m in REG_RE.finditer(op):
        if m.group(1):
            out += [(m.group(1), i) for i in range(int(m.group(2)), int(m.group(3)) + 1)]
        elif m.group(4):
            out.append((m.group(4), int(m.group(5))))
        else:
            out.append((m.group(6), 0))
    return out

TRANS = ('v_exp_f32', 'v_log_f32', 'v_rcp_f32', 'v_rsq_f32', 'v_sqrt_f32', 'v_sin_f32', 'v_cos_f32')

class I:
    __slots__ = ('text', 'op', 'kind', 'rd', 'wr', 'tag', 'srcc', 'passes', 'wide', 'ab', 'note', 'dpp')
    def __init__(self, text, tag=None, note=None):
        self.text = text; self.tag = tag; self.note = note
        self.rd = set(); self.wr = set(); self.srcc = set(); self.ab = set(); self.passes = 0; self.wide = False
        self.dpp = False
        t = text.split(';')[0].strip()
        if t.endswith(':'):
            self.op = 'label'; self.kind = 'label'; return
        if t.startswith('.') or t == '':
            self.op = 'dir'; self.kind = 'label'; return
        parts = t.split(None, 1)
        op = parts[0]; self.op = op
        rest = parts[1] if len(parts) > 1 else ''
        ops = [o.strip() for o in rest.split(',')] if rest else []
        R = lambda k: set(regs_of(ops[k]))
        allr = lambda a: set().union(*[set(regs_of(o)) for o in ops[a:]]) if len(ops) > a else set()
        if op.startswith('v_mfma'):
            self.kind = 'mfma'; self.wr = R(0); self.ab = R(1) | R(2); self.srcc = R(3); self.rd = self.ab | self.srcc
            self.passes = 4 if '16x16x32' in op else 8
        elif op.startswith('v_cmp'):
            self.kind = 'valu'; self.wr = R(0); self.rd = allr(1)
        elif op.startswith('v_permlane'):
            self.kind = 'valu'; self.wr = allr(0); self.rd = allr(0)
        elif op.startswith('v_'):
            self.kind = 'trans' if re.sub(r'_e(32|64)$', '', op) in TRANS else 'valu'
            self.wr = R(0); self.rd = allr(1)
            if op.startswith(('v_fmac', 'v_pk_fmac', 'v_dot2c')): self.rd |= self.wr
            if op.startswith('v_cndmask') and len(ops) == 3: self.rd.add(('vcc', 0))
            if 'row_' in t or 'quad_perm' in t or 'wave_' in t:
                self.dpp = True; self.rd |= self.wr
        elif op.startswith('ds_'):
            if op.startswith(('ds_read', 'ds_bpermute', 'ds_permute', 'ds_swizzle')):
                self.kind = 'dsr'; self.wr = R(0); self.rd = allr(1)
            else:
                self.kind = 'dsw'; self.rd = allr(0)
        elif op.startswith(('buffer_load', 'global_load')):
            if re.search(r'\blds\b', t) or '_lds_' in op:
                self.kind = 'dma'; self.rd = allr(0) | {('m0', 0)}
            else:
                self.kind = 'vml'; self.wr = R(0); self.rd = allr(1)
        elif op.startswith(('buffer_store', 'global_store', 'buffer_atomic', 'global_atomic')):
            self.kind = 'vms'; self.rd = allr(0)
            if 'atomic' in op and 'sc0' in t:
                self.kind = 'vml'; self.wr = R(0)
            self.wide = op.endswith(('x3', 'x4'))
            if self.wide: self.srcc = R(0) if op.startswith('buffer') else R(1)
        elif op.startswith(('buffer_wbl2', 'buffer_inv')):
            self.kind = 'vms'
        elif op.startswith(('s_load', 's_memtime', 's_memrealtime', 's_buffer_load')):
            self.kind = 'smem'; self.wr = R(0); self.rd = allr(1)
        elif op in ('s_waitcnt', 's_barrier', 's_nop', 's_endpgm', 's_setprio', 's_sleep') or op.startswith(('s_branch', 's_cbranch')):
            self.kind = 'ctl'
        elif op.startswith('s_cmp') or op.startswith('s_bitcmp'):
            self.kind = 'salu'; self.rd = allr(0); self.wr = {('scc', 0)}
        elif op.startswith('s_'):
            self.kind = 'salu'; self.wr = R(0); self.rd = allr(1)
            if 'saveexec' in op: self.wr.add(('exec', 0))
        elif op == 'WAITTAG':
            self.kind = 'waittag'
        else:
            raise ValueError('unknown op ' + text)
    def states(self):
        if self.kind in ('label', 'waittag'): return 0
        if self.op == 's_nop': return int(self.text.split()[1].rstrip(';'), 0) + 1
        return 1

class Seq:
    def __init__(self): self.l = []
    def __call__(self, text, tag=None, note=None):
        for line in text.strip().split('\n'):
            line = line.strip()
            if line: self.l.append(I(line, tag, note))
    def waittag(self, tag):
        i = I('WAITTAG'); i.tag = tag; self.l.append(i)
    def extend(self, other): self.l.extend(other.l if isinstance(other, Seq) else other)

class Hidden:
    def __init__(self, S): self.S = S
    def __call__(self, text, tag=None):
        n = len(self.S.l); self.S(text)
        for ins in self.S.l[n:]:
            if ins.kind in ('vml', 'vms', 'dma') or ins.op == 's_waitcnt': ins.tag = 'HIDDEN'

class Prog:
    def __init__(self, name): self.name = name; self.segs = []
    def straight(self):
        s = Seq(); self.segs.append(('s', s)); return s
    def loop(self):
        s = Seq(); self.segs.append(('l', s)); return s
    def outofline(self):
        s = Seq(); self.segs.append(('x', s)); return s

    def _linear(self):
        lin = []
        for kind, s in self.segs:
            if kind == 's': lin += s.l
            elif kind == 'l': lin += s.l + s.l + s.l
        return lin

    def insert_waits(self):
        pre = {}
        def run(lin):
            changed = False
            vm = []; lg = []
            for ins in lin:
                key = id(ins)
                def apply(v, l):
                    if v is not None: del vm[:max(0, len(vm) - v)]
                    if l is not None: del lg[:max(0, len(lg) - l)]
                if key in pre: apply(*pre[key])
                if ins.op == 's_waitcnt':
                    if ins.tag == 'HIDDEN' and 'vmcnt' in ins.text: continue
                    m = re.search(r'vmcnt\((\d+)\)', ins.text); m2 = re.search(r'lgkmcnt\((\d+)\)', ins.text)
                    apply(int(m.group(1)) if m else None, int(m2.group(1)) if m2 else None)
                    continue
                needv = needl = None
                if ins.tag == 'HIDDEN': continue
                touched = ins.rd | ins.wr
                if ins.kind == 'waittag':
                    for k, (w, t) in enumerate(vm):
                        if t == ins.tag: needv = len(vm) - 1 - k
                else:
                    for k, (w, t) in enumerate(vm):
                        if w & touched: needv = len(vm) - 1 - k
                    for k, (w, t) in enumerate(lg):
                        if w & touched: needl = len(lg) - 1 - k if t != 'smem' else 0
                    if needl is not None and any(t == 'smem' for w, t in lg): needl = 0
                if needv is not None or needl is not None:
                    if needv is not None: needv = min(needv, 63)
                    if needl is not None: needl = min(needl, 15)
                    old = pre.get(key, [None, None])
                    mn = lambda a, b: b if a is None else (a if b is None else min(a, b))
                    pre[key] = [mn(old[0], needv), mn(old[1], needl)]
                    changed = True
                    apply(*pre[key])
                if ins.tag == 'HIDDEN': pass
                elif ins.kind in ('vml', 'vms', 'dma'): vm.append((set(ins.wr), ins.tag))
                elif ins.kind in ('dsr', 'dsw'): lg.append((set(ins.wr), ins.tag))
                elif ins.kind == 'smem': lg.append((set(ins.wr), 'smem')); lg.append((set(ins.wr), 'smem'))
                assert len(vm) <= 63 or True
            return changed
        lin = self._linear()
        for _ in range(10):
            if not run(lin): break
        else: raise RuntimeError('wait insertion did not converge')
        for kind, s in self.segs:
            if kind == 'x':
                for _ in range(10):
                    if not run(s.l): break
        for kind, s in self.segs:
            new = []
            for ins in s.l:
                if id(ins) in pre:
                    v, l = pre[id(ins)]
                    t = 's_waitcnt' + (f' vmcnt({v})' if v is not None else '') + (f' lgkmcnt({l})' if l is not None else '')
                    new.append(I(t))
                if ins.kind != 'waittag': new.append(ins)
            s.l = new

    @staticmethod
    def need(p, c):
        n = 0
        pv = p.kind in ('valu', 'trans')
        cv = c.kind in ('valu', 'trans')
        vw = {r for r in p.wr if r[0] in 'va' and r[0] != 'vcc'}
        vw = {r for r in p.wr if r[0] in ('v', 'a')}
        sw = {r for r in p.wr if r[0] in ('s', 'vcc')}
        if pv and c.kind == 'mfma' and (vw & c.rd): n = max(n, 2)
        if p.kind == 'mfma':
            big = {4: 8, 8: 12}[p.passes]
            if c.kind == 'mfma':
                if p.wr & c.ab: n = max(n, big)
                if p.wr & c.srcc and not (p.wr == c.srcc and p.passes == c.passes): n = max(n, {4: 6, 8: 10}[p.passes])
                if p.wr & c.wr and not (p.wr == c.srcc): n = max(n, big)
            elif cv or c.kind in ('dsr', 'dsw', 'vml', 'vms', 'dma'):
                if p.wr & (c.rd | c.wr): n = max(n, big)
            if cv and (p.srcc & c.wr): n = max(n, {4: 3, 8: 7}[p.passes])
            if c.kind in ('dsr', 'vml') and (p.srcc & c.wr): n = max(n, {4: 3, 8: 7}[p.passes])
        if p.kind == 'trans' and cv and (vw & c.rd): n = max(n, 1)
        if pv and sw:
            if cv and (sw & c.rd): n = max(n, 4 if c.op.startswith(('v_readlane', 'v_writelane')) else 2)
            if c.kind in ('vml', 'vms', 'dma') and (sw & c.rd): n = max(n, 5)
        if pv and vw:
            if c.op.startswith(('v_readfirstlane', 'v_readlane')) and (vw & c.rd): n = max(n, 1)
            if c.op.startswith('v_permlane') and (vw & c.rd): n = max(n, 2)
            if c.dpp and (vw & c.rd): n = max(n, 2)
        if p.kind == 'salu' and ('m0', 0) in p.wr and c.kind == 'dma': n = max(n, 1)
        if p.op.startswith('v_dot') and c.op != p.op and (vw & (c.rd | c.wr)): n = max(n, 3)
        if p.kind == 'vms' and p.wide and (p.srcc & c.wr): n = max(n, 2)
        if p.kind == 'salu' and ('exec', 0) in p.wr and c.dpp: n = max(n, 5)
        return n

    def fix_hazards(self, verbose=True):
        log = []
        def scan(lin):
            for j, c in enumerate(lin):
                if c.kind in ('label', 'ctl'): continue
                dist = 0
                for k in range(j - 1, max(-1, j - 30), -1):
                    p = lin[k]
                    if dist >= 20: break
                    n = self.need(p, c)
                    if n > dist: return c, n - dist, p
                    dist += p.states()
            return None
        def fix(getlin):
            while True:
                r = scan(getlin())
                if r is None: break
                c, n, p = r
                for kind, s in self.segs:
                    for idx, ins in enumerate(s.l):
                        if ins is c:
                            s.l.insert(idx, I(f's_nop {n-1}'))
                            log.append((kind, n, p.text, c.text)); break
                    else: continue
                    break
        fix(self._linear)
        for kind, s in self.segs:
            if kind == 'x': fix(lambda s=s: s.l)
        if verbose:
            for k, n, p, c in log:
                if k == 'l': print(f'[{self.name}] loop nop {n}: {p}  ->  {c}')
        return log

    def text(self):
        out = []
        for kind, s in [x for x in self.segs if x[0] != 'x'] + [x for x in self.segs if x[0] == 'x']:
            for ins in s.l:
                t = ins.text
                out.append(t if ins.kind == 'label' else '    ' + t)
        return '\n'.join(out) + '\n'

    FLEX = ('v_exp_f32', 'v_add_f32', 'v_max_f32', 'v_add_u32', 'v_mul_f32', 'v_sub_f32', 'v_rcp_f32', 'v_mov_b32',
            'v_lshlrev_b32', 'v_and_b32', 'v_min_f32', 'v_xor_b32', 'v_or_b32', 'v_lshrrev_b32', 'v_rsq_f32')
    @staticmethod
    def size(ins):
        if ins.kind == 'label': return 0
        t = ins.text.split(';')[0]; op = ins.op
        lit = False
        for tok in re.findall(r'(?<![\w\[:])(-?0x[0-9a-fA-F]+|-?\d+)(?![\w\]:.])', t.split(None, 1)[1] if ' ' in t else ''):
            v = int(tok, 0)
            if not (-16 <= v <= 64): lit = True
        if 'L_' in t and '-L_' in t: lit = True
        if ins.kind in ('mfma', 'dsr', 'dsw', 'vml', 'vms', 'dma', 'smem'): return 8
        if ins.kind == 'ctl': return 4
        if ins.kind == 'salu': return 8 if lit else 4
        if op.endswith('_e64') or 'dpp' in op: return 8
        vop12 = Prog.FLEX + ('v_fmac_f32', 'v_readfirstlane_b32', 'v_mul_u32_u24', 'v_cndmask_b32', 'v_dot2c_f32_bf16', 'v_min_u32',
                             'v_permlane16_swap_b32', 'v_permlane32_swap_b32', 'v_log_f32', 'v_sqrt_f32')
        if op in vop12 or op.startswith('v_cmp'):
            ops = [o.strip() for o in t.split(None, 1)[1].split(',')]
            if len(ops) >= 3 and not ops[2].startswith('v'): return 8
            return 8 if lit else 4
        return 8
    def align_pass(self):
        lin = [i for k, s in self.segs if k != 'x' for i in s.l]
        off = 0
        for n, ins in enumerate(lin):
            if ins.text.startswith('.p2align'): off = 0; continue
            sz = self.size(ins)
            if ins.op in self.FLEX and sz == 4 and off % 8 == 0:
                nxt = next((j for j in lin[n+1:n+4] if j.kind != 'label'), None)
                if nxt is not None and self.size(nxt) == 8:
                    ins.text = ins.text.replace(ins.op, ins.op + '_e64', 1); sz = 8
            off += sz
        return off

    def finalize(self, verbose=True, align=False):
        self.insert_waits()
        self.fix_hazards(verbose)
        if align: self.align_pass()
        return self.text()

def kernel_header(name):
    return f'.globl {name}\n.p2align 8\n.type {name},@function\n{name}:\n'

def kernel_desc(name, vgpr, sgpr, accum):
    return (f'.p2align 6\n.amdhsa_kernel {name}\n  .amdhsa_next_free_vgpr {vgpr}\n  .amdhsa_next_free_sgpr {sgpr}\n'
            f'  .amdhsa_accum_offset {accum}\n  .amdhsa_group_segment_fixed_size 0\n  .amdhsa_kernarg_size 120\n'
            f'  .amdhsa_user_sgpr_count 2\n  .amdhsa_user_sgpr_kernarg_segment_ptr 1\n'
            f'  .amdhsa_system_sgpr_workgroup_id_x 1\n.end_amdhsa_kernel\n')

def interleave(seq, mfmas, fillers, cap=2):
    G = len(mfmas)
    gaps = [[] for _ in range(G)]
    load = [0.0] * G
    last = {}
    for f in fillers:
        ch = f.get('chain')
        g = max(f.get('lo', 0), last.get(ch, 0))
        hi = f.get('hi', G - 1)
        c = f.get('c', 1)
        while g < hi and load[g] + c > cap: g += 1
        g = min(g, G - 1)
        gaps[g].append(f); load[g] += c
        if ch is not None: last[ch] = g
    for g in range(G):
        seq(mfmas[g])
        for f in gaps[g]:
            if f.get('waittag') is not None: seq.waittag(f['waittag']); continue
            ts = f['t'] if isinstance(f['t'], list) else [f['t']]
            for t in ts: seq(t, tag=f.get('tag'))
    return load

class Op:
    def __init__(self, t, c=1, fixed=None, lo=0, deps=(), tag=None, waittag=None, pri=0, dist=0):
        self.t = t if isinstance(t, list) else [t]
        self.c = c; self.fixed = fixed; self.lo = lo; self.deps = list(deps); self.tag = tag
        self.waittag = waittag; self.pri = pri; self.gap = None; self.dist = dist

def schedule(seq, mfmas, ops, cap=2.0, last=None, verbose=None):
    G = len(mfmas)
    last = G - 1 if last is None else last
    fixed = [o for o in ops if o.fixed is not None]
    flex = [o for o in ops if o.fixed is None]
    def attempt(extra):
        for o in ops: o.gap = None
        gaps = [[] for _ in range(G)]
        load = [0.0] * G
        for o in fixed:
            o.gap = o.fixed; gaps[o.fixed].append(o); load[o.fixed] += o.c
        pend = list(flex)
        bank = 0.0
        for g in range(last + 1):
            bank = min(bank + extra, 1.0)
            while True:
                room = cap - load[g] + (1.0 if bank >= 1.0 else 0.0)
                cand = None
                for o in pend:
                    if o.lo > g or o.c > room: continue
                    if any(d.gap is None or d.gap + o.dist > g for d in o.deps): continue
                    if cand is None or o.pri > cand.pri: cand = o
                if cand is None: break
                if load[g] + cand.c > cap: bank -= 1.0
                cand.gap = g; gaps[g].append(cand); load[g] += cand.c; pend.remove(cand)
        return (gaps, load) if not pend else None
    res = None
    for e in range(0, 41):
        res = attempt(e * 0.05)
        if res: break
    assert res, 'cannot schedule'
    gaps, load = res
    if verbose: print(f'[{verbose}] extra={e*0.05:.2f} total load={sum(load):.0f} over={sum(max(0,l-cap) for l in load):.0f} gaps={G}')
    for g in range(G):
        seq(mfmas[g])
        for o in gaps[g]:
            if o.waittag is not None: seq.waittag(o.waittag); continue
            for t in o.t: seq(t, tag=o.tag)
    return load
```

```python
from asmlib import *

KA = dict(x=0, k=8, v=16, wq=24, wo=32, bx=40, w1=48, b1=56, w2=64, b2=72, c=80, wmod=88, out=96, dbg=104, ws=112)
SZ = dict(x=2048*448*2, k=8*2048*256*2, v=8*2048*256*2, wq=448*4096*2, wo=4096*448*2, w1=448*1792*2, b1=1792*2,
          w2=1792*448*2, b2=448*2, c=448*2, wmod=448*2688*2, out=2048*448*2, dbg=256)

WS_MOD = 0
WS_MODQ = 12288
WS_MODG = 16384
WS_FL = 32768
WS_FW = 1 << 16
WS_Y = 1 << 17
WS_X2 = WS_Y + (2 << 20)
WS_P1 = WS_X2 + (4 << 20)
WS_P2 = WS_P1 + (16 << 20)
WS_DBG = WS_P2 + (16 << 20)
WS_SIZE = 268435456

def srd(S, d, ptr_lo, nbytes, add=None):
    if add:
        S(f's_add_u32 s{d}, s{ptr_lo}, {add}')
        S(f's_addc_u32 s{d+1}, s{ptr_lo+1}, 0')
    else:
        S(f's_mov_b32 s{d}, s{ptr_lo}')
        S(f's_mov_b32 s{d+1}, s{ptr_lo+1}')
    S(f's_mov_b32 s{d+2}, {nbytes}')
    S(f's_mov_b32 s{d+3}, 0x00020000')

STAMPS = {'on': False}
OPT = {}
ST0 = 80
def stamp(S, idx, front=False):
    if OPT.get('fstamp') and STAMPS.get('phase', 0) == 0 and idx in (4, 5, 6, 7, 8) and not front: return
    if front and not OPT.get('fstamp'): return
    if STAMPS['on']:
        S(f'{"s_memtime" if OPT.get("cyc") else "s_memrealtime"} s[{ST0+2*idx}:{ST0+2*idx+1}]')
def stamp_flush(S, n, kidx, wave_sgpr, ws_lo, vt=0):
    if not STAMPS['on']: return
    S('s_waitcnt lgkmcnt(0) vmcnt(0)')
    S('s_mov_b64 exec, -1')
    srd(S, 76, ws_lo, 1 << 20, add=WS_DBG + (32 << 20))
    S(f's_add_u32 s75, s2, {kidx*256}'); S('s_lshl_b32 s75, s75, 2'); S(f's_add_u32 s75, s75, s{wave_sgpr}'); S('s_lshl_b32 s75, s75, 6')
    S(f'v_mov_b32 v{vt+1}, 0')
    for i in range(n):
        S(f'v_mov_b32 v{vt}, s{ST0+2*i}')
        S(f'buffer_store_dword v{vt}, v{vt+1}, s[76:79], s75 offen offset:{4*i}')
        S('s_nop 1')
```

```python
from common import *
import struct
def f32(x): return '0x%08x' % struct.unpack('<I', struct.pack('<f', x))[0]

SLOT = 32768
sG, sRB, sW, sP, sS = 3, 4, 5, 6, 7
SX, SK, SV, SWQ, SWO, SMOD, SP1 = 8, 12, 16, 20, 24, 28, 32
sT0, sT1, sT2, sT3 = 36, 37, 38, 39
sSL = [40, 41, 42, 43, 44]
sKT, sKT2, sVT, sVT2 = 45, 46, 47, 48
sDK, sDV = 49, 50
sCNT, sTHR, sW4K, sRET, sQG = 51, 52, 53, 54, 55
sONE = 61
sPTR = 56
SDBG = 8

KA_ = [0, 1]; VA_ = [2, 3, 4, 5]; DK, DV = 6, 7
L_ = 8; PS = 12; S_ = 16; P_ = 48; NM = 80; FR = 96; TMP = 120; NT = 6; WA, WD = 126, 127; Q_ = 128
SWM, sWO, sWI = 76, 58, 59
def Sr(kb, qb): return S_ + (kb*4+qb)*4
def Pr(b, qb): return P_ + (b*4+qb)*4
def Qr(qb, st): return Q_ + (qb*8+st)*4
def Or(j, qb): return (j*4+qb)*4
def vr(b, n=4): return f'v[{b}:{b+n-1}]'
def ar(b, n=4): return f'a[{b}:{b+n-1}]'
MF = 'v_mfma_f32_16x16x32_bf16'

RING = [4,5,0,1, 3,4,5,0, 2,3,4,5, 1,2,3,4] + [k % 6 for k in range(16)]
AHEAD = 4
def FRr(f): return FR + 4*RING[f % 32]

def allreduce_kg_ops(x, t, op):
    return [f'v_mov_b32 v{t}, v{x}', f'v_permlane16_swap_b32 v{x}, v{t}', f'{op} v{x}, v{x}, v{t}',
            f'v_mov_b32 v{t}, v{x}', f'v_permlane32_swap_b32 v{x}, v{t}', f'{op} v{x}, v{x}, v{t}']
def allreduce_kg(S, x, t, op):
    for l in allreduce_kg_ops(x, t, op): S(l)

def k_read(f):
    kb, st = f // 8, f % 8
    return [f'ds_read_b128 {vr(FRr(f))}, v{KA_[st & 1]} offset:{kb*8192 + (st >> 1)*1024}']
def v_read(f, jmap=None):
    j = f - 16
    if jmap: j = jmap[j]
    cg, jj = j >> 2, j & 3
    b = FRr(f)
    return [f'ds_read_b64_tr_b16 {vr(b,2)}, v{VA_[jj]} offset:{cg*1024}',
            f'ds_read_b64_tr_b16 {vr(b+2,2)}, v{VA_[jj]} offset:{8192 + cg*1024}']

def dma_kv(which, slot_s, n):
    u, cg = n >> 2, n & 3
    if which == 'K':
        gcg = cg; srd_, vo, so = SK, DK, (sKT, sKT2)[u]
    else:
        gcg = cg ^ (2 * u); srd_, vo, so = SV, DV, (sVT, sVT2)[u]
    return [f's_add_u32 m0, s{slot_s}, {u*16384 + cg*1024 - gcg*128}',
            f'buffer_load_dwordx4 v{vo}, s[{srd_}:{srd_+3}], s{so} offen offset:{gcg*128} lds']

def kv_groups(which, slot_s):
    out = []
    for n in range(8):
        pre, t = dma_kv(which, slot_s, n)
        out.append(dict(pre=[pre], t=[t], post=[], tag=which))
    a, b = (sKT, sKT2) if which == 'K' else (sVT, sVT2)
    out[3]['post'] = [f's_add_u32 s{a}, s{a}, 32768']
    out[7]['post'] = [f's_add_u32 s{b}, s{b}, 32768']
    return out

def emit_groups(S, groups):
    for gr in groups:
        for t in gr['pre']: S(t)
        for t in gr['t']: S(t, tag=gr['tag'])
        for t in gr.get('post', []): S(t)

def mfma_A(first_c=None):
    out = []
    for kb in range(2):
        for st in range(8):
            f = kb*8 + st
            for qb in range(4):
                c = vr(Sr(kb, qb)) if st else (first_c if first_c is not None else vr(NM + 4*qb))
                out.append(f'{MF} {vr(Sr(kb,qb))}, {vr(FRr(f))}, {vr(Qr(qb,st))}, {c}')
    return out
def mfma_B(buf, zero=False, jmap=None):
    out = []
    for n, qb in B_ORDER():
        j = jmap[n] if jmap else n
        out.append(f'{MF} {ar(Or(j,qb))}, {vr(FRr(16+n))}, {vr(Pr(buf,qb))}, {"0" if zero else ar(Or(j,qb))}')
    return out
def B_ORDER():
    if OPT.get('b2', 1):
        return [(2*p + [1,0,0,1,1,0,0,1][i], i // 2) for p in range(8) for i in range(8)]
    return [(n, qb) for n in range(16) for qb in range(4)]

def softmax_linear(buf, kb, qb, tbase):
    s = Sr(kb, qb); t = [TMP + ((tbase + r) % NT) for r in range(4)]
    o = [f'v_exp_f32 v{t[r]}, v{s+r}' for r in range(4)]
    if kb == 0: o.append(f'v_add_f32 v{PS+qb}, v{t[0]}, v{t[1]}')
    else: o += [f'v_add_f32 v{PS+qb}, v{PS+qb}, v{t[0]}', f'v_add_f32 v{PS+qb}, v{PS+qb}, v{t[1]}']
    o.append(f'v_cvt_pk_bf16_f32 v{Pr(buf,qb)+2*kb}, v{t[0]}, v{t[1]}')
    o.append(f'v_add_f32 v{PS+qb}, v{PS+qb}, v{t[2]}')
    o.append(f'v_cvt_pk_bf16_f32 v{Pr(buf,qb)+2*kb+1}, v{t[2]}, v{t[3]}')
    o.append(f'v_add_f32 v{PS+qb}, v{PS+qb}, v{t[3]}')
    return o

def softmax_sched(buf):
    ops = []
    readers = {}
    lastps = {}
    e = 0
    prev_exp = None
    for kb in range(2):
        for qb in range(4):
            lo = kb*32 + 28 + qb + 5
            s = Sr(kb, qb)
            ex = []
            for r in range(4):
                t = TMP + (e % NT); e += 1
                o = Op(f'v_exp_f32 v{t}, v{s+r}', c=2, lo=lo, deps=readers.get(t, []) + ([prev_exp] if prev_exp else []), pri=1)
                o.reg = t; readers[t] = []
                ops.append(o); ex.append(o); prev_exp = o
            def light(txt, srcs, chain=None):
                d = list(srcs) + ([lastps[chain]] if chain is not None and chain in lastps else [])
                o = Op(txt, c=1, lo=lo, deps=d, pri=2, dist=1)
                for x in srcs: readers[x.reg].append(o)
                if chain is not None: lastps[chain] = o
                ops.append(o); return o
            ps = PS + qb
            if OPT.get('dotsum', 0):
                for hf in range(2):
                    pr = Pr(buf,qb)+2*kb+hf
                    cv = light(f'v_cvt_pk_bf16_f32 v{pr}, v{ex[2*hf].reg}, v{ex[2*hf+1].reg}', ex[2*hf:2*hf+2])
                    first = (kb == 0 and hf == 0)
                    o = Op(f'v_dot2_f32_bf16 v{ps}, v{pr}, s{sONE}, {"0" if first else f"v{ps}"}', c=1, lo=lo,
                           deps=[cv] + ([lastps[qb]] if qb in lastps else []), pri=2, dist=1)
                    lastps[qb] = o; ops.append(o)
                continue
            if kb == 0: light(f'v_add_f32 v{ps}, v{ex[0].reg}, v{ex[1].reg}', ex[:2], qb)
            else:
                light(f'v_add_f32 v{ps}, v{ps}, v{ex[0].reg}', ex[:1], qb)
                light(f'v_add_f32 v{ps}, v{ps}, v{ex[1].reg}', ex[1:2], qb)
            light(f'v_cvt_pk_bf16_f32 v{Pr(buf,qb)+2*kb}, v{ex[0].reg}, v{ex[1].reg}', ex[:2])
            light(f'v_add_f32 v{ps}, v{ps}, v{ex[2].reg}', ex[2:3], qb)
            light(f'v_add_f32 v{ps}, v{ps}, v{ex[3].reg}', ex[3:4], qb)
            light(f'v_cvt_pk_bf16_f32 v{Pr(buf,qb)+2*kb+1}, v{ex[2].reg}, v{ex[3].reg}', ex[2:4])
    t = TMP
    a = Op(f'v_max3_f32 v{t}, v{PS}, v{PS+1}, v{PS+2}', deps=[lastps[0], lastps[1], lastps[2]] + readers[t], pri=2, dist=2)
    b = Op(f'v_max_f32 v{t}, v{t}, v{PS+3}', deps=[a, lastps[3]], pri=2, dist=2)
    c = Op(f'v_cmp_nge_f32 vcc, s{sTHR}, v{t}', deps=[b], pri=2)
    return ops + [a, b, c]

def renorm(S, buf, first):
    mx, t, f = TMP, TMP+1, TMP+1
    for qb in range(4):
        a, b = Sr(0, qb), Sr(1, qb)
        S(f'v_max3_f32 v{mx}, v{a}, v{a+1}, v{a+2}')
        S(f'v_max3_f32 v{mx}, v{mx}, v{a+3}, v{b}')
        S(f'v_max3_f32 v{mx}, v{mx}, v{b+1}, v{b+2}')
        S(f'v_max_f32 v{mx}, v{mx}, v{b+3}')
        allreduce_kg(S, mx, t, 'v_max_f32')
        if first:
            for r in range(4): S(f'v_sub_f32 v{NM+4*qb+r}, 0, v{mx}')
        else:
            S(f'v_max_f32 v{mx}, 0, v{mx}')
            for r in range(4): S(f'v_sub_f32 v{NM+4*qb+r}, v{NM+4*qb+r}, v{mx}')
            S(f'v_sub_f32 v{f}, 0, v{mx}')
            S(f'v_exp_f32 v{f}, v{f}')
            S(f'v_mul_f32 v{L_+qb}, v{L_+qb}, v{f}')
            for j in range(16):
                for r in range(4): S(f'v_accvgpr_read_b32 v{TMP+2+r}, a{Or(j,qb)+r}')
                for r in range(4): S(f'v_mul_f32 v{TMP+2+r}, v{TMP+2+r}, v{f}')
                for r in range(4): S(f'v_accvgpr_write_b32 a{Or(j,qb)+r}, v{TMP+2+r}')
        for kb in range(2):
            for r in range(4): S(f'v_sub_f32 v{Sr(kb,qb)+r}, v{Sr(kb,qb)+r}, v{mx}')
        for kb in range(2):
            for txt in softmax_linear(buf, kb, qb, 2): S(txt)

DMA_POSS = [[2, 6, 14, 18, 26, 30, 38, 46, 54, 62, 70, 78, 86, 94, 102, 106],
            [2, 6, 10, 14, 18, 22, 26, 30, 42, 54, 66, 76, 84, 92, 100, 106],
            [2, 6, 13, 18, 22, 29, 34, 42, 50, 58, 68, 76, 84, 92, 100, 106]]
def iteration(S, par, roles, dma, nextK=True, label=None, zeroB=False, warm=False, ladd=True, tail_ops=()):
    KR, VR, KN, D1, D2 = roles
    m = mfma_A() + mfma_B(par, zero=zeroB)
    ops = []
    for f in range(32):
        tgt = f + AHEAD
        g = f*4
        if tgt >= 32 and not nextK: continue
        if tgt == 32:
            ops.append(Op('', fixed=g, waittag='V')); ops.append(Op('s_barrier', fixed=g))
        rd = k_read(tgt % 32) if (tgt % 32) < 16 else v_read(tgt)
        if OPT.get('rdpack', 0):
            g0 = g - 3 if (f >= 16 and f % 2 == 1 and OPT.get('b2', 1)) else g
            for k, t in enumerate(rd): ops.append(Op(t, fixed=g0))
        else:
            g0 = g - 2 if (f >= 16 and f % 2 == 1 and OPT.get('b2', 1)) else g
            for k, t in enumerate(rd): ops.append(Op(t, fixed=g0 + k))
        if tgt == 15:
            a = Op(f's_sub_u32 s{sDK}, s{KN}, s{KR}', lo=0, pri=0); ops.append(a)
            for r in KA_: ops.append(Op(f'v_add_u32 v{r}, s{sDK}, v{r}', lo=g+1, deps=[a], pri=3))
        if tgt == 31:
            a = Op(f's_sub_u32 s{sDV}, s{D1}, s{VR}', lo=0, pri=0); ops.append(a)
            for r in VA_: ops.append(Op(f'v_add_u32 v{r}, s{sDV}, v{r}', lo=g+2, deps=[a], pri=0))
    for f in range(32):
        if f < 16 or f % 2 == 1 or not OPT.get('b2', 1): ops.append(Op([], fixed=f*4 + 3, c=1))
    for k, gr in enumerate(dma):
        g = DMA_POSS[OPT.get('dmapos', 0)][k]
        ops.append(Op(gr['pre'], fixed=g-1, c=len(gr['pre'])))
        ops.append(Op(gr['t'], fixed=g, c=2, tag=gr['tag']))
        if gr['post']: ops.append(Op(gr['post'], lo=g+1, pri=3))
    if warm:
        ops.append(Op(f'buffer_load_dword v{WD}, v{WA}, s[{SWM}:{SWM+3}], s{sWO} offen', fixed=61, c=2, tag='warm'))
        ops.append(Op(f's_add_u32 s{sWO}, s{sWO}, s{sWI}', lo=62, pri=3))
    if ladd:
        for qb in range(4): ops.append(Op(f'v_add_f32 v{L_+qb}, v{L_+qb}, v{PS+qb}', fixed=[4, 5, 8, 9][qb]))
    prev = None
    for t in tail_ops[:-1]:
        o = Op(t, lo=110, deps=[prev] if prev else [], pri=0); ops.append(o); prev = o
    if tail_ops: ops.append(Op(tail_ops[-1], fixed=127))
    ops += softmax_sched(par ^ 1)
    schedule(S, m, ops, verbose=f'iter {label}', last=126)
    S(f's_cbranch_vccnz L_rare_{label}')
    S(f'L_back_{label}:')

def merge_into(S, body, groups, every, start=0):
    gi = 0
    for n, ins in enumerate(body.l):
        S.l.append(ins)
        if n >= start and (n - start) % every == every - 1 and gi < len(groups):
            emit_groups(S, [groups[gi]]); gi += 1
    emit_groups(S, groups[gi:])

SDB = 72
sNON = 60
FC, FW, FA_, FT = 208, 216, 244, 252
MODL = 3*SLOT + 57344

def spin(X, name, body, done_branch, sleep=2):
    X(f's_mov_b32 s{sT1}, 65536')
    X(f'L_{name}_l:')
    body()
    X(done_branch)
    X(f's_sleep {sleep}')
    X(f's_sub_u32 s{sT1}, s{sT1}, 1'); X(f's_cmp_lg_u32 s{sT1}, 0'); X(f's_cbranch_scc1 L_{name}_l')

def gen_k2(debug=None):
    P = Prog('k2'); S = P.straight()
    STAMPS['phase'] = 0
    NAG = OPT.get('nag', 0)
    S('s_cmp_ge_u32 s2, 256')
    S('s_cbranch_scc1 L_k2_end')
    S(f's_load_dwordx4 s[40:43], s[0:1], {KA["c"]}')
    S(f's_load_dwordx2 s[44:45], s[0:1], {KA["dbg"]}')
    S(f's_load_dwordx8 s[{sPTR}:{sPTR+7}], s[0:1], 0')
    S(f's_load_dwordx2 s[{sPTR+8}:{sPTR+9}], s[0:1], {KA["wo"]}')
    S(f's_load_dwordx2 s[{sPTR+10}:{sPTR+11}], s[0:1], {KA["ws"]}')
    S(f's_load_dwordx2 s[{sPTR+12}:{sPTR+13}], s[0:1], {KA["w1"]}')
    S(f's_load_dwordx2 s[{sPTR+14}:{sPTR+15}], s[0:1], {KA["w2"]}')
    S('s_memrealtime s[48:49]')
    stamp(S, 0)
    S(f's_and_b32 s{sG}, s2, 7')
    S(f's_lshr_b32 s{sRB}, s2, 3')
    LN_, I16, KG, DQ, L16, T64 = 8, 9, 10, 11, 16, 24
    LQ = [12, 13, 14, 15]
    t0, t1, t2, t3, t4, t5, t6 = 17, 18, 19, 20, 21, 22, 23
    KVW, ZR, NON, TID, WB = 25, 26, 27, 28, [29, 30]
    A0, XP, XF, MB = 32, 40, 96, 208
    S(f'v_lshrrev_b32 v{t0}, 6, v0')
    S(f'v_and_b32 v{LN_}, 63, v0')
    S(f'v_readfirstlane_b32 s{sW}, v{t0}')
    S(f'v_and_b32 v{I16}, 15, v0')
    S(f'v_bfe_u32 v{KG}, v0, 4, 2')
    S(f'v_lshlrev_b32 v{T64}, 6, v0')
    S(f'v_lshlrev_b32 v{L16}, 4, v{LN_}')
    S(f'v_mov_b32 v{TID}, v0'); S(f'v_mov_b32 v{ZR}, 0')
    S(f'v_mul_u32_u24 v{t0}, 896, v{I16}')
    S(f'v_lshl_add_u32 v{t0}, v{KG}, 4, v{t0}')
    S(f'v_and_b32 v{FT}, 3, v0'); S(f'v_lshrrev_b32 v{FT+1}, 2, v0')
    S(f'v_lshlrev_b32 v{FT+2}, 1, v{FT+1}')
    S(f'v_mul_u32_u24 v{FT+3}, 5376, v{FT+1}'); S(f'v_lshl_add_u32 v{FT+3}, v{FT}, 4, v{FT+3}')
    S(f's_lshr_b32 s{sP}, s{sW}, 1')
    S(f's_and_b32 s{sS}, s{sW}, 1')
    S(f's_lshl_b32 s{sW4K}, s{sW}, 12')
    S(f's_lshl_b32 s{sT0}, s{sRB}, 6'); S(f's_lshl_b32 s{sT1}, s{sW}, 4'); S(f's_add_u32 s{sT0}, s{sT0}, s{sT1}')
    S(f's_mul_i32 s{sT0}, s{sT0}, 896')
    sHB = sT3
    S(f's_mul_i32 s{sHB}, s{sW}, 14336')
    S(f's_add_u32 s{sHB}, s{sHB}, {3*SLOT}')
    S(f's_lshl_b32 s{sQG}, s{sG}, 10')
    S('s_lshl_b32 s46, s2, 6')
    S('s_waitcnt lgkmcnt(0)')
    stamp(S, 4, True)
    srd(S, SDB, 44, 256)
    X = Hidden(S)
    srd(S, SX, sPTR, SZ['x'])
    S('s_cmp_lt_u32 s2, 84'); S('s_cbranch_scc1 L_fr_issue')
    for s in range(14):
        S(f'buffer_load_dwordx4 {vr(XP+4*s)}, v{t0}, s[{SX}:{SX+3}], s{sT0} offen offset:{64*s}')
    S('s_branch L_fr_issued')
    S('L_fr_issue:')
    srd(X, 24, 40, SZ['c']); srd(X, 32, 42, SZ['wmod'])
    for k in range(7): X(f'buffer_load_ushort v{FC+k}, v{FT+2}, s[24:27], 0 offen offset:{128*k}')
    for k in range(7):
        X(f's_add_u32 s47, s46, {k*64*5376}')
        X(f'buffer_load_dwordx4 {vr(FW+4*k)}, v{FT+3}, s[32:35], s47 offen')
    PX = OPT.get('px', 0)
    for s in range(PX):
        X(f'buffer_load_dwordx4 {vr(XP+4*s)}, v{t0}, s[{SX}:{SX+3}], s{sT0} offen offset:{64*s}')
    X(f's_or_b32 s47, s2, s{sW}'); X('s_cmp_lg_u32 s47, 0'); X('s_cbranch_scc1 L_fr_issued')
    X('s_or_b32 s48, s48, 1'); X(f'v_mov_b32 v{A0}, s48'); X(f'v_mov_b32 v{A0+1}, 0')
    X('s_mov_b64 exec, 1')
    X(f'buffer_atomic_cmpswap {vr(A0,2)}, v{ZR}, s[{SDB}:{SDB+3}], 0 offen sc1')
    X('s_mov_b64 exec, -1')
    X('L_fr_issued:')
    XA_, CW, QW = 31, A0+6, A0+7
    sXO = 50
    S(f'v_mov_b32 v{XA_}, v{t0}'); S(f's_mov_b32 s{sXO}, s{sT0}')
    S(f'v_mov_b32 v{t2}, 0x7fffffff'); S('v_cmp_gt_u32 vcc, 64, v0'); S(f'v_cndmask_b32 v{CW}, v{t2}, v{T64}, vcc')
    srd(S, SWQ, sPTR+6, SZ['wq'])
    S(f'v_lshrrev_b32 v{t1}, 4, v0'); S(f'v_lshlrev_b32 v{t1}, 13, v{t1}'); S(f'v_lshl_add_u32 v{t1}, v{I16}, 6, v{t1}')
    S('v_cmp_gt_u32 vcc, 224, v0'); S(f'v_cndmask_b32 v{QW}, v{t2}, v{t1}, vcc')
    S('v_cmp_gt_u32 vcc, 128, v0'); S(f'v_cndmask_b32 v{KVW}, v{t2}, v{T64}, vcc')
    S(f's_lshl_b32 s{sT0}, s{sG}, 20')
    for d, ptr in ((SK, sPTR+2), (SV, sPTR+4)):
        S(f's_add_u32 s{d}, s{ptr}, s{sT0}'); S(f's_addc_u32 s{d+1}, s{ptr+1}, 0')
        S(f's_mov_b32 s{d+2}, {1<<20}'); S(f's_mov_b32 s{d+3}, 0x00020000')
    S(f'v_lshrrev_b32 v{t1}, 3, v{LN_}')
    S(f'v_and_b32 v{t2}, 7, v{LN_}')
    S(f'v_and_b32 v{t3}, 6, v{t1}')
    S(f'v_xor_b32 v{t3}, v{t3}, v{t2}')
    S(f'v_lshrrev_b32 v{t4}, 2, v{t1}')
    S(f'v_lshlrev_b32 v{t4}, 3, v{t4}')
    S(f'v_and_b32 v{t5}, 3, v{t1}')
    S(f'v_add_u32 v{t4}, v{t4}, v{t5}')
    S(f'v_lshlrev_b32 v{t4}, 13, v{t4}')
    S(f'v_lshl_add_u32 v{DQ}, v{t3}, 4, v{t4}')
    S(f's_lshl_b32 s{sT1}, s{sW}, 8')
    S(f'v_add_u32 v{DQ}, s{sT1}, v{DQ}')
    def wq_off(k, rg): return k*262144 + (16*(rg&1) + 4*(rg>>1))*8192
    def wq_lds(k, rg, cg): return ((k + 1) % 3) * SLOT + (rg>>1)*16384 + ((rg&1)*2+cg)*1024
    def wq_dma(k):
        out = []
        for rg in range(4):
            for cg in range(2):
                pre = [f's_add_u32 m0, s{sW4K}, {wq_lds(k, rg, cg) - cg*128}']
                if cg == 0: pre.append(f's_add_u32 s{sT2}, s{sQG}, {wq_off(k, rg)}')
                out.append(dict(pre=pre, t=[f'buffer_load_dwordx4 v{DQ}, s[{SWQ}:{SWQ+3}], s{sT2} offen offset:{cg*128} lds'], post=[], tag=f'wq{k}'))
        return out
    def wq_ag(k):
        out = []
        for rg in range(4):
            for cg in range(2):
                pre = [f's_add_u32 s{sT2}, s{sQG}, {wq_off(k, rg)}'] if cg == 0 else []
                out.append(dict(pre=pre, t=[f'buffer_load_dwordx4 {ar((k-3)*32 + (rg*2+cg)*4)}, v{DQ}, s[{SWQ}:{SWQ+3}], s{sT2} offen offset:{cg*128}'], post=[], tag=None))
        return out
    def wq_put(k):
        out = []
        for rg in range(4):
            for cg in range(2):
                a = wq_lds(k, rg, cg)
                out.append(f'ds_write_b128 v{WB[a // 65536]}, {ar((k-3)*32 + (rg*2+cg)*4)} offset:{a % 65536}')
        return out
    S(f'v_lshlrev_b32 v{t4}, 9, v{t1}')
    S(f'v_add_u32 v{t4}, s{sW4K}, v{t4}')
    S(f'v_lshl_add_u32 v{DV}, v{t3}, 4, v{t4}')
    S(f'v_lshrrev_b32 v{t5}, 1, v{t1}')
    S(f's_lshl_b32 s{sT1}, s{sS}, 2')
    S(f'v_or_b32 v{t5}, s{sT1}, v{t5}')
    S(f'v_xor_b32 v{t5}, v{t5}, v{t2}')
    S(f'v_lshl_add_u32 v{DK}, v{t5}, 4, v{t4}')
    S(f'v_and_b32 v{t0}, 1, v{KG}')
    S(f'v_lshlrev_b32 v{t0}, 2, v{t0}')
    S(f'v_lshrrev_b32 v{t1}, 2, v{I16}')
    S(f'v_add_u32 v{t0}, v{t0}, v{t1}')
    S(f'v_lshrrev_b32 v{t1}, 1, v{t0}')
    S(f'v_and_b32 v{t2}, 3, v{I16}')
    S(f'v_lshlrev_b32 v{t2}, 3, v{t2}')
    S(f'v_lshl_add_u32 v{t2}, v{t0}, 7, v{t2}')
    S(f'v_lshrrev_b32 v{t3}, 1, v{KG}')
    S(f's_lshl_b32 s{sT0}, s{sS}, 14')
    S(f's_add_u32 s{sT1}, s{sT0}, {2*SLOT}')
    for jj in range(4):
        S(f'v_xor_b32 v{t4}, {jj}, v{t1}')
        S(f'v_lshl_add_u32 v{t4}, v{t4}, 5, v{t2}')
        S(f'v_lshl_add_u32 v{LQ[jj]}, v{t3}, 11, v{t4}')
        S(f'v_add_u32 v{LQ[jj]}, s{sW4K}, v{LQ[jj]}')
        S(f'v_lshl_add_u32 v{VA_[jj]}, v{t3}, 12, v{t4}')
        S(f'v_add_u32 v{VA_[jj]}, s{sT1}, v{VA_[jj]}')
    S(f'v_lshrrev_b32 v{t0}, 3, v{I16}')
    S(f'v_and_b32 v{t1}, 7, v{I16}')
    S(f'v_lshrrev_b32 v{t2}, 1, v{t1}')
    S(f'v_lshl_or_b32 v{t2}, v{t0}, 2, v{t2}')
    S(f'v_xor_b32 v{t2}, v{t2}, v{KG}')
    S(f'v_lshlrev_b32 v{t2}, 4, v{t2}')
    S(f'v_lshl_add_u32 v{t2}, v{t1}, 7, v{t2}')
    S(f'v_lshl_add_u32 v{t2}, v{t0}, 12, v{t2}')
    S(f'v_add_u32 v{KA_[0]}, s{sT0}, v{t2}')
    S(f'v_xor_b32 v{KA_[1]}, 64, v{KA_[0]}')
    S(f's_mov_b32 s{sKT}, 0'); S(f's_mov_b32 s{sKT2}, 16384'); S(f's_mov_b32 s{sVT}, 0'); S(f's_mov_b32 s{sVT2}, 16384')
    for k in range(5): S(f's_add_u32 s{sSL[k]}, s{sW4K}, {k*SLOT}')
    S(f's_mov_b32 s{sTHR}, {f32(2.0**24)}')
    S(f's_mov_b32 s{sONE}, 0x3f803f80')
    MR, HW = t5, t6
    S(f'v_lshlrev_b32 v{MR}, 5, v{KG}')
    S(f'v_add_u32 v{MR}, {MODL}, v{MR}')
    S(f'v_add_u32 v{HW}, s{sHB}, v{L16}')
    S(f'v_add_u32 v{WB[0]}, s{sW4K}, v{L16}'); S(f'v_add_u32 v{WB[1]}, 65536, v{WB[0]}')
    S(f's_lshl_b32 s{sT0}, s{sG}, 5'); S(f's_add_u32 s{sT0}, s{sT0}, s{sRB}'); S(f's_mul_i32 s{sT0}, s{sT0}, 14336')
    S(f's_mul_i32 s{sT1}, s{sS}, 7168'); S(f's_add_u32 s{sT0}, s{sT0}, s{sT1}')
    S(f's_add_u32 s{SWM}, s{sPTR+8}, s{sT0}'); S(f's_addc_u32 s{SWM+1}, s{sPTR+9}, 0')
    S(f's_mov_b32 s{SWM+2}, 7168'); S(f's_mov_b32 s{SWM+3}, 0x00020000')
    S(f's_mov_b32 s{sWO}, 0'); S(f's_mov_b32 s{sWI}, 2048'); S(f's_mov_b32 s{sDK}, 1024')
    S(f's_cmp_ge_u32 s{sW}, 2')
    S('s_cbranch_scc1 L_k2_wm')
    S(f's_cmp_eq_u32 s{sW}, 0')
    S(f's_cselect_b32 s{SWM}, s{SK}, s{SV}'); S(f's_cselect_b32 s{SWM+1}, s{SK+1}, s{SV+1}')
    S(f's_mov_b32 s{SWM+2}, {1<<20}')
    S(f's_lshl_b32 s{sWO}, s{sRB}, 10'); S(f's_add_u32 s{sWO}, s{sWO}, {8*32768}')
    S(f's_mov_b32 s{sWI}, 65536'); S(f's_mov_b32 s{sDK}, 32768')
    S('L_k2_wm:')
    S(f'v_mul_lo_u32 v{T64}, v{KG}, s{sDK}')
    S(f'v_lshl_add_u32 v{T64}, v{I16}, 6, v{T64}')
    S(f'v_cmp_gt_u32 vcc, 32, v{LN_}'); S(f'v_mov_b32 v{t0}, 0x7fffffff'); S(f'v_cndmask_b32 v{T64}, v{t0}, v{T64}, vcc')
    srd(S, SMOD, sPTR+10, 65536)
    allq = wq_dma(0) + wq_dma(1) + wq_dma(2)
    for k in range(3, 3 + NAG): allq += wq_ag(k)
    NE = OPT.get('wqearly', 0)
    def nonce_get(name):
        X(f'v_readfirstlane_b32 s{sNON}, v{NON}')
        X(f's_cmp_lg_u32 s{sNON}, 0'); X(f's_cbranch_scc1 L_{name}')
        def nb():
            X(f'buffer_load_dword v{NON}, v{ZR}, s[{SDB}:{SDB+3}], 0 offen sc0 sc1')
            X('s_waitcnt vmcnt(0)')
            X(f'v_readfirstlane_b32 s{sNON}, v{NON}')
            X(f's_cmp_lg_u32 s{sNON}, 0')
        spin(X, name, nb, f's_cbranch_scc1 L_{name}')
        X(f'L_{name}:')
    S('s_cmp_ge_u32 s2, 84'); S('s_cbranch_scc1 L_fr_sigd')
    T = FT
    stamp(S, 5, True)
    X(f's_waitcnt vmcnt({7 + PX})')
    stamp(S, 6, True)
    for k in range(7):
        c = FC + k
        X(f'v_lshlrev_b32 v{c}, 16, v{c}')
        X(f'v_mul_f32 v{T+2}, 0xbfb8aa3b, v{c}')
        X(f'v_exp_f32 v{T+2}, v{T+2}')
        X(f'v_add_f32 v{T+2}, 1.0, v{T+2}')
        X(f'v_rcp_f32 v{T+2}, v{T+2}')
        X(f'v_mul_f32 v{T+2}, v{T+2}, v{c}')
        X(f'v_cvt_pk_bf16_f32 v{T+2}, v{T+2}, v{ZR}')
        X(f'v_lshlrev_b32 v{XF+k}, 16, v{T+2}')
        X(f'v_mov_b32 v{c}, v{T+2}')
    for j in range(8): X(f'v_mov_b32 v{FA_+j}, 0')
    LB = 3*SLOT
    X(f'v_mul_u32_u24 v{T+2}, 144, v{T+1}'); X(f'v_lshl_add_u32 v{T+2}, v{T}, 5, v{T+2}'); X(f'v_add_u32 v{T+2}, {LB}, v{T+2}')
    X(f'v_and_b32 v{T}, 31, v{TID}'); X(f'v_lshrrev_b32 v{T+1}, 5, v{TID}')
    X(f'v_mul_u32_u24 v{T+3}, 1152, v{T+1}'); X(f'v_lshl_add_u32 v{T+3}, v{T}, 2, v{T+3}'); X(f'v_add_u32 v{T+3}, {LB}, v{T+3}')
    X(f's_cmp_eq_u32 s{sW}, 0'); X(f's_cselect_b32 s{sT0}, 0, 0x1000')
    for k in range(7):
        X(f's_waitcnt vmcnt({PX + (6 - k if k == 0 else 7 - k)})')
        if k == 0: X(f'buffer_load_dword v{NON}, v{ZR}, s[{SDB}:{SDB+3}], s{sT0} offen sc0 sc1')
        for j in range(4):
            w = FW + 4*k + j
            X(f'v_dot2c_f32_bf16 v{FA_+2*j}, v{w}, v{FC+k}')
            X(f'v_dot2c_f32_bf16 v{FA_+2*j+1}, v{w}, v{XF+k}')
    stamp(S, 7, True)
    X(f'ds_write_b128 v{T+2}, {vr(FA_)}'); X(f'ds_write_b128 v{T+2}, {vr(FA_+4)} offset:16')
    X(f'v_lshlrev_b32 v{T+2}, 2, v{TID}'); X(f'v_add_u32 v{T+2}, {LB}, v{T+2}')
    X('s_waitcnt lgkmcnt(0)'); X('s_barrier')
    for k in range(8): X(f'ds_read_b32 v{FW+k}, v{T+3} offset:{144*k}')
    for k in range(1, 8): X(f'v_add_f32 v{FW}, v{FW}, v{FW+k}')
    X(f'ds_write_b32 v{T+2}, v{FW} offset:9216')
    X(f'v_lshlrev_b32 v{T}, 2, v{T}'); X(f'v_add_u32 v{T+1}, {LB}, v{T}')
    X('s_waitcnt lgkmcnt(0)'); X('s_barrier')
    X(f's_cmp_lg_u32 s{sW}, 0'); X('s_cbranch_scc1 L_fr_px')
    R = FW + 8
    for k in range(8): X(f'ds_read_b32 v{R+k}, v{T+1} offset:{9216+128*k}')
    for k in range(1, 8): X(f'v_add_f32 v{R}, v{R}, v{R+k}')
    X(f'v_cvt_pk_bf16_f32 v{R}, v{R}, v{R}'); X(f'v_lshlrev_b32 v{R}, 16, v{R}')
    X(f'v_add_f32 v{R+1}, 1.0, v{R}'); X(f'v_cvt_pk_bf16_f32 v{R+1}, v{R+1}, v{R+1}'); X(f'v_lshlrev_b32 v{R+1}, 16, v{R+1}')
    X(f's_sub_u32 s{sT0}, s2, 14'); X(f's_cmp_lt_u32 s{sT0}, 14'); X(f's_cselect_b32 s{sT1}, 1, 0')
    X(f's_sub_u32 s{sT0}, s2, 56'); X(f's_cmp_lt_u32 s{sT0}, 14'); X(f's_cselect_b32 s{sT1}, 1, s{sT1}')
    X(f's_cmp_eq_u32 s{sT1}, 1'); X('s_cselect_b64 vcc, -1, 0')
    X(f'v_cndmask_b32 v{R}, v{R}, v{R+1}, vcc')
    X(f'v_mul_f32 v{R+2}, 0x3db8aa3b, v{R}')
    X(f'v_lshlrev_b32 v{T+1}, 1, v{T}')
    X('s_waitcnt vmcnt(0)')
    nonce_get('fr_non')
    stamp(S, 8, True)
    X(f'v_mov_b32 v{R+3}, s{sNON}')
    X(f's_lshl_b32 s{sT0}, s2, 8'); X(f's_add_u32 s{sT0}, s{sT0}, {WS_MODG}')
    X('s_cmp_lt_u32 s2, 28'); X(f's_cselect_b32 s{sT0}, s{sT0}, 0x100000')
    X(f's_lshl_b32 s{sT1}, s2, 7')
    X('s_mov_b32 exec_hi, 0')
    X(f'buffer_store_dwordx2 {vr(R+2,2)}, v{T+1}, s[{SMOD}:{SMOD+3}], s{sT0} offen sc0 sc1')
    X(f'buffer_store_dword v{R}, v{T}, s[{SMOD}:{SMOD+3}], s{sT1} offen sc0 sc1')
    X('s_mov_b64 exec, -1')
    X('L_fr_px:')
    for s in range(PX, 14):
        X(f'buffer_load_dwordx4 {vr(XP+4*s)}, v{XA_}, s[{SX}:{SX+3}], s{sXO} offen offset:{64*s}')
    X('L_fr_sigd:')
    S('s_getpc_b64 s[24:25]')
    S('L_fr_pc:')
    S('s_sub_u32 s24, s24, L_fr_pc-L_code_begin'); S('s_subb_u32 s25, s25, 0')
    S('s_mov_b32 s26, L_code_end-L_code_begin'); S('s_mov_b32 s27, 0x00020000')
    S(f's_lshl_b32 s{sT1}, s{sRB}, 12')
    S(f'buffer_load_dword v{FT}, v{CW}, s[24:27], s{sT1} offen')
    S(f's_mul_i32 s{sT0}, s{sRB}, {14*8192}'); S(f's_add_u32 s{sT0}, s{sT0}, s{sQG}')
    S(f'buffer_load_dword v{FT+1}, v{QW}, s[{SWQ}:{SWQ+3}], s{sT0} offen')
    S(f's_cmp_eq_u32 s{sW}, 0'); S(f's_cselect_b32 s{sT0}, 0, 0x1000')
    X(f'buffer_load_dword v{NON}, v{ZR}, s[{SDB}:{SDB+3}], s{sT0} offen sc0 sc1')
    emit_groups(S, allq[:NE])
    srd(S, SWO, sPTR+8, SZ['wo'])
    srd(S, SP1, sPTR+10, 256*57344, add=WS_P1)

    if STAMPS['on']: S(f'v_mov_b32 v{A0}, v{XP+55}')
    stamp(S, 1)
    B = Seq()
    for d in range(56):
        B(f'v_lshlrev_b32 v{XF+2*d}, 16, v{XP+d}')
        B(f'v_and_b32 v{XF+2*d+1}, 0xffff0000, v{XP+d}')
        if d % 2 == 1:
            k = (d // 2) % 4
            if d < 8: B(f'v_pk_add_f32 {vr(A0+2*k,2)}, {vr(XF+2*d-2,2)}, {vr(XF+2*d,2)}')
            else:
                B(f'v_pk_add_f32 {vr(A0+2*k,2)}, {vr(A0+2*k,2)}, {vr(XF+2*d-2,2)}')
                B(f'v_pk_add_f32 {vr(A0+2*((k+2)%4),2)}, {vr(A0+2*((k+2)%4),2)}, {vr(XF+2*d,2)}')
    B(f'v_pk_add_f32 {vr(A0,2)}, {vr(A0,2)}, {vr(A0+2,2)}')
    B(f'v_pk_add_f32 {vr(A0+4,2)}, {vr(A0+4,2)}, {vr(A0+6,2)}')
    B(f'v_pk_add_f32 {vr(A0,2)}, {vr(A0,2)}, {vr(A0+4,2)}')
    B(f'v_add_f32 v{A0}, v{A0}, v{A0+1}')
    allreduce_kg(B, A0, A0+1, 'v_add_f32')
    B(f'v_mul_f32 v{A0}, {f32(-1.0/448)}, v{A0}')
    B(f'v_mov_b32 v{A0+1}, v{A0}')
    B0 = XP
    for d in range(56):
        B(f'v_pk_add_f32 {vr(XF+2*d,2)}, {vr(XF+2*d,2)}, {vr(A0,2)}')
        if d >= 1:
            e = d - 1
            if e < 4: B(f'v_pk_mul_f32 {vr(B0+2*e,2)}, {vr(XF+2*e,2)}, {vr(XF+2*e,2)}')
            else: B(f'v_pk_fma_f32 {vr(B0+2*(e%4),2)}, {vr(XF+2*e,2)}, {vr(XF+2*e,2)}, {vr(B0+2*(e%4),2)}')
    B(f'v_pk_fma_f32 {vr(B0+6,2)}, {vr(XF+110,2)}, {vr(XF+110,2)}, {vr(B0+6,2)}')
    B(f'v_pk_add_f32 {vr(B0,2)}, {vr(B0,2)}, {vr(B0+2,2)}')
    B(f'v_pk_add_f32 {vr(B0+4,2)}, {vr(B0+4,2)}, {vr(B0+6,2)}')
    B(f'v_pk_add_f32 {vr(B0,2)}, {vr(B0,2)}, {vr(B0+4,2)}')
    B(f'v_add_f32 v{A0}, v{B0}, v{B0+1}')
    allreduce_kg(B, A0, A0+1, 'v_add_f32')
    B(f'v_mov_b32 v{A0+2}, {f32(1e-5)}')
    B(f'v_fmac_f32 v{A0+2}, {f32(1.0/448)}, v{A0}')
    B(f'v_rsq_f32 v{A0}, v{A0+2}')
    B(f'v_mov_b32 v{A0+1}, v{A0}')
    for d in range(56): B(f'v_pk_mul_f32 {vr(XF+2*d,2)}, {vr(XF+2*d,2)}, {vr(A0,2)}')
    merge_into(S, B, allq[NE:], every=OPT.get('wqevery', 16), start=4)
    S(f's_cmp_lg_u32 s{sW}, 0'); S('s_cbranch_scc1 L_fr_got')
    X(f'v_lshlrev_b32 v{t0}, 3, v{LN_}'); X(f'v_add_u32 v{t0}, {MODL}, v{t0}')
    X(f's_waitcnt vmcnt({min(63, len(allq))})')
    nonce_get('fr_non2')
    X(f's_mov_b32 s{sT0}, {WS_MODG}'); X(f's_mov_b32 s{sT2}, {WS_MODG + 4096}')
    def gb():
        for k in range(7):
            X(f'buffer_load_dwordx4 {vr(MB+4*k)}, v{L16}, s[{SMOD}:{SMOD+3}], s{sT0 if k < 4 else sT2} offen offset:{1024*(k%4)} sc0 sc1')
        X('s_waitcnt vmcnt(0)')
        X(f'v_xor_b32 v{t1}, s{sNON}, v{MB+1}')
        for k in range(1, 14):
            X(f'v_xor_b32 v{t2}, s{sNON}, v{MB+2*k+1}'); X(f'v_or_b32 v{t1}, v{t1}, v{t2}')
        X(f'v_cmp_ne_u32 vcc, 0, v{t1}')
    spin(X, 'fr_g', gb, 's_cbranch_vccz L_fr_gok', sleep=OPT.get('psleep', 8))
    X('L_fr_gok:')
    for k in range(7):
        X(f'v_mov_b32 v{MB+4*k+1}, v{MB+4*k+2}')
        X(f'ds_write_b64 v{t0}, {vr(MB+4*k,2)} offset:{512*k}')
    X(f'v_mov_b32 v{t1}, s{sNON}')
    X(f'ds_write_b32 v{t0}, v{t1} offset:3584')
    X('s_waitcnt lgkmcnt(0)')
    X('L_fr_got:')
    S('s_barrier')
    stamp(S, 2)
    S(f'ds_read_b32 v{NON}, v{MR} offset:3584')
    def mod_regs(s): return [MB, MB+16, MB+32, B0+8, B0+24, B0+40][s % 6]
    def mod_read(s):
        b = mod_regs(s)
        S(f'ds_read_b128 {vr(b)}, v{MR} offset:{s*128}')
        S(f'ds_read_b128 {vr(b+4)}, v{MR} offset:{s*128 + 16}')
        S(f'ds_read_b128 {vr(b+8)}, v{MR} offset:{1792 + s*128}')
        S(f'ds_read_b128 {vr(b+12)}, v{MR} offset:{1792 + s*128 + 16}')
    def mod_apply(s):
        b = mod_regs(s); x = XF + 8*s
        for k in range(4): S(f'v_pk_fma_f32 {vr(x+2*k,2)}, {vr(x+2*k,2)}, {vr(b+8+2*k,2)}, {vr(b+2*k,2)}')
        h = B0 + 4*(s % 2)
        for k in range(4): S(f'v_cvt_pk_bf16_f32 v{h+k}, v{x+2*k}, v{x+2*k+1}')
        S(f'ds_write_b128 v{HW}, {vr(h)} offset:{s*1024}')
    for s in range(3): mod_read(s)
    S(f's_lshl_b32 s{sT0}, s{sRB}, 13')
    S(f'buffer_load_dword v{A0+4}, v{KVW}, s[{SK}:{SK+3}], s{sT0} offen')
    S(f'buffer_load_dword v{A0+5}, v{KVW}, s[{SV}:{SV+3}], s{sT0} offen')
    for s in range(14):
        if s + 3 < 14: mod_read(s + 3)
        mod_apply(s)
    S(f'v_add_u32 v{t0}, {3*SLOT}, v{L16}')
    S(f'v_readfirstlane_b32 s{sNON}, v{NON}')
    S('s_waitcnt lgkmcnt(0)')
    S('s_barrier')
    def Hr(qb, s): return vr(64 + ((s & 1)*4+qb)*4)
    QF = 96
    def qfr(n): return QF + 4*(n % 8)
    cur = [0]
    def q_reads(n):
        k, j = n // 8, n % 8
        cg, jj = j >> 2, j & 3
        slot = ((k + 1) % 3) * SLOT
        base = slot // 65536 * 65536
        out = []
        if j == 0:
            if not (3 <= k < 3 + NAG): out.append(dict(waittag=f'wq{k}'))
            d = base - cur[0]
            if d:
                for a in LQ: out.append(dict(t=f'v_add_u32 v{a}, {d & 0xffffffff}, v{a}'))
            cur[0] = base
        o = slot - base + cg*1024
        out.append(dict(t=f'ds_read_b64_tr_b16 {vr(qfr(n),2)}, v{LQ[jj]} offset:{o}'))
        out.append(dict(t=f'ds_read_b64_tr_b16 {vr(qfr(n)+2,2)}, v{LQ[jj]} offset:{o+16384}'))
        return out
    def h_read(s, qb):
        return f'ds_read_b128 {Hr(qb,s)}, v{t0} offset:{qb*14336 + s*1024}'
    QAH = 5
    for qb in range(4): S(h_read(0, qb))
    for n in range(QAH):
        for f in q_reads(n):
            if 'waittag' in f: S.waittag(f['waittag'])
            else: S(f['t'])
    stamp(S, 3)
    QA = 128
    m = []; F = []
    for n in range(112):
        k, j = n // 8, n % 8
        for qb in range(4):
            acc = vr(QA + Or(j, qb))
            m.append(f'{MF} {acc}, {vr(qfr(n))}, {Hr(qb,k)}, {acc if k else "0"}')
        if n + QAH < 112:
            for f in q_reads(n + QAH):
                f.update(lo=n*4, c=1, chain='rd'); F.append(f)
        if k + 1 < 14 and j < 4:
            F.append(dict(t=h_read(k + 1, j), lo=n*4 + 2, c=1, chain='rd'))
    for k in range(13):
        if k + 3 < 3 + NAG:
            for i, t in enumerate(wq_put(k + 3)):
                F.append(dict(t=t, lo=(k + 1)*32 + 1 + 3*i, c=2, chain='dma'))
            continue
        groups = wq_dma(k + 3) if k + 3 < 14 else kv_groups('K', sSL[k - 11])
        for i, gr in enumerate(groups):
            g = (k + 1)*32 + 2 + 3*i
            F.append(dict(t=gr['pre'], lo=g-1, c=1, chain='dma'))
            F.append(dict(t=gr['t'] + gr['post'], lo=g, c=2, tag=gr['tag'], chain='dma'))
    F.sort(key=lambda f: f['lo'])
    interleave(S, m, F, cap=3)
    stamp(S, 4)
    S(f's_sub_u32 s{sT0}, s2, 28'); S(f's_cmp_ge_u32 s{sT0}, 56'); S('s_cbranch_scc1 L_fr_mf')
    S(f's_cmp_lg_u32 s{sW}, 0'); S('s_cbranch_scc1 L_fr_mf')
    X(f's_lshl_b32 s{sT0}, s{sT0}, 2'); X(f's_add_u32 s{sT0}, s{sT0}, {WS_FL + 3*4096}')
    X(f'v_mov_b32 v{NON}, s{sNON}')
    X('s_mov_b64 exec, 1')
    X(f'buffer_store_dword v{NON}, v{ZR}, s[{SMOD}:{SMOD+3}], s{sT0} offen sc0 sc1')
    X('s_mov_b64 exec, -1')
    X('L_fr_mf:')
    emit_groups(S, kv_groups('V', sSL[2]))
    S(f'v_lshlrev_b32 v{t0}, 4, v{I16}')
    S(f'v_lshrrev_b32 v{t1}, 1, v{KG}')
    S(f'v_lshl_add_u32 v{t0}, v{t1}, 8, v{t0}')
    S(f'v_and_b32 v{t1}, 1, v{KG}')
    S(f'v_lshl_add_u32 v{t0}, v{t1}, 3, v{t0}')
    S(f's_lshl_b32 s{sT0}, s{sP}, 15'); S(f's_add_u32 s{sT0}, s{sT0}, {3*SLOT}')
    S(f's_lshl_b32 s{sT1}, s{sS}, 12'); S(f's_add_u32 s{sT1}, s{sT1}, s{sT0}')
    S(f'v_add_u32 v{t0}, s{sT1}, v{t0}')
    S(f'v_add_u32 v{TMP}, s{sT0}, v{L16}')
    S(f'v_mov_b32 v{TMP+1}, v{L16}')
    S(f'v_mov_b32 v{WA}, v{T64}')
    for j in range(8):
        for qb in range(4):
            a = QA + Or(j, qb); t = 32 + 2*(j*4+qb)
            S(f'v_cvt_pk_bf16_f32 v{t}, v{a}, v{a+1}')
            S(f'v_cvt_pk_bf16_f32 v{t+1}, v{a+2}, v{a+3}')
    S('s_barrier')
    for j in range(8):
        for qb in range(4):
            t = 32 + 2*(j*4+qb)
            S(f'ds_write_b64 v{t0}, {vr(t,2)} offset:{(qb*8 + (j>>1))*1024 + (j&1)*512}')
    S.waittag('K')
    S('s_waitcnt lgkmcnt(0)')
    S('s_barrier')
    for f in range(AHEAD):
        for t in k_read(f): S(t)
    for st in range(8):
        for qb in range(4):
            S(f'ds_read_b128 {vr(Qr(qb,st))}, v{TMP} offset:{(qb*8+st)*1024}')
    if debug: srd(S, SDBG, sPTR+10, 32 << 20, add=WS_DBG)
    if debug == 'q':
        S(f's_lshl_b32 s{sT0}, s2, 2'); S(f's_add_u32 s{sT0}, s{sT0}, s{sW}'); S(f's_lshl_b32 s{sT0}, s{sT0}, 15')
        for f in range(32):
            S(f'buffer_store_dwordx4 {vr(Q_+4*f)}, v{TMP+1}, s[{SDBG}:{SDBG+3}], s{sT0} offen')
            S(f's_add_u32 s{sT0}, s{sT0}, 1024')
        S('s_waitcnt vmcnt(0)')
    F = []
    for f in range(16 - AHEAD):
        F.append(dict(t=k_read(f + AHEAD), lo=f*4, c=1))
    F.append(dict(t='s_barrier', lo=33, c=1, chain='dma'))
    for i, gr in enumerate(kv_groups('K', sSL[3])):
        F.append(dict(t=gr['pre'], lo=34 + 3*i, c=1, chain='dma'))
        F.append(dict(t=gr['t'] + gr['post'], lo=35 + 3*i, c=2, tag=gr['tag'], chain='dma'))
    F.sort(key=lambda f: f['lo'])
    interleave(S, mfma_A(first_c='0'), F, cap=3)
    for a in KA_: S(f'v_add_u32 v{a}, {SLOT}, v{a}')
    for f in range(AHEAD):
        for t in k_read(f): S(t)
    S.waittag('V')
    S('s_barrier')
    renorm(S, 0, True)
    for qb in range(4): S(f'v_mov_b32 v{L_+qb}, 0')
    S(f's_mov_b32 s{sCNT}, 0')
    stamp(S, 5)
    if STAMPS['on']: S('s_waitcnt lgkmcnt(0)')

    def perm(r): KR, VR, KN, D1, D2 = r; return (KN, D1, D2, KR, VR)
    def both(r): return kv_groups('V', r[3]) + kv_groups('K', r[4])
    r0 = (sSL[1], sSL[2], sSL[3], sSL[4], sSL[0])
    r1 = perm(r0); r2 = perm(r1); r3 = perm(r2); r4 = perm(r3)
    iteration(S, 0, r0, both(r0), label='f', zeroB=True)
    iteration(S, 1, r1, both(r1), label='g')
    Lp = P.loop()
    Lp('.p2align 6'); Lp('L_k2_loop:')
    iteration(Lp, 0, r2, both(r2), label='a', warm=True)
    mp = {r2[k]: r4[k] for k in range(5)}
    start = r2[0]
    to = [f's_mov_b32 s{sT0}, s{start}']
    d = start
    while mp[d] != start:
        to.append(f's_mov_b32 s{d}, s{mp[d]}'); d = mp[d]
    to.append(f's_mov_b32 s{d}, s{sT0}')
    to.append(f's_add_u32 s{sCNT}, s{sCNT}, 1')
    to.append(f's_cmp_lt_u32 s{sCNT}, 13')
    iteration(Lp, 1, r3, both(r3), label='b', tail_ops=to)
    Lp('s_cbranch_scc1 L_k2_loop')
    S = P.straight()
    iteration(S, 0, r2, both(r2), label='c')
    iteration(S, 1, r3, kv_groups('V', r3[3]), label='d')
    iteration(S, 0, r4, kv_groups('V', r4[3]), nextK=False, label='e')
    return P, S

RARE = {'f': 1, 'g': 0, 'a': 1, 'b': 0, 'c': 1, 'd': 0, 'e': 1}
```

```python
from k2 import *


def proj_out(S, nsteps, bfrag_addr, srd_w, s_wbase, row_bytes, ring_s, ring_v, WV, ACC, srd_out, s_out, VO, VO2,
             pre_issued, tagp, BF=16, AF=48, stamp_idx=8, extra=None):
    NR = len(ring_s)
    def w_dma(k):
        out = []
        for n in range(7):
            pre = [f's_add_u32 m0, s{ring_s[k % NR]}, {n*1024}']
            if n == 0: pre.append(f's_add_u32 s{sT0}, s{s_wbase}, {k*32*row_bytes}')
            out.append(dict(pre=pre, t=[f'buffer_load_dwordx4 v{WV+n}, s[{srd_w}:{srd_w+3}], s{sT0} offen lds'], tag=f'{tagp}{k}'))
        return out
    def afr(n): return AF + 4*(n % 8)
    def bfr(k, qb): return BF + ((k & 1)*4 + qb)*4
    def a_reads(n):
        k, i = n // 7, n % 7
        out = []
        if i == 0: out.append(dict(waittag=f'{tagp}{k}'))
        out.append(dict(t=f'ds_read_b64_tr_b16 {vr(afr(n),2)}, v{ring_v[k % NR]} offset:{i*32}'))
        out.append(dict(t=f'ds_read_b64_tr_b16 {vr(afr(n)+2,2)}, v{ring_v[k % NR]} offset:{3584 + i*32}'))
        return out
    def b_read(k, qb):
        a, o = bfrag_addr(k, qb)
        return f'ds_read_b128 {vr(bfr(k,qb))}, v{a} offset:{o}'
    AH = 5
    for qb in range(4): S(b_read(0, qb))
    for n in range(AH):
        for f in a_reads(n):
            if 'waittag' in f: S.waittag(f['waittag'])
            else: S(f['t'])
    m = []; F = []
    N = nsteps * 7
    for n in range(N):
        k, i = n // 7, n % 7
        for qb in range(4):
            acc = vr(ACC + (i*4+qb)*4)
            m.append(f'{MF} {acc}, {vr(afr(n))}, {vr(bfr(k,qb))}, {acc if k else "0"}')
        if n + AH < N:
            for f in a_reads(n + AH):
                f.update(lo=n*4, c=1, chain='rd'); F.append(f)
        if k + 1 < nsteps and i < 2:
            F.append(dict(t=b_read(k+1, 2*i), lo=n*4 + 2, c=1, chain='rd'))
            F.append(dict(t=b_read(k+1, 2*i+1), lo=n*4 + 3, c=1, chain='rd'))
    for k in range(nsteps):
        if k + NR < nsteps and k + NR >= pre_issued:
            for i, gr in enumerate(w_dma(k + NR)):
                g = (k + 1)*28 + 4*i + 2
                F.append(dict(t=gr['pre'], lo=g-1, c=1, chain='dma'))
                F.append(dict(t=gr['t'], lo=g, c=2, tag=gr['tag'], chain='dma'))
    sQ = [sT1, sT2, sT3, sRET]
    if extra is not None:
        grp = []
        for ins in extra.l:
            if ins.op in ('s_addc_u32', 's_subb_u32', 's_cselect_b32', 's_cselect_b64'): grp[-1].append(ins.text)
            else: grp.append([ins.text])
        for i, g in enumerate(grp): F.append(dict(t=g, lo=8 + 2*i, c=len(g), chain='ex'))
    CO_ = OPT.get("pst", "sc0 sc1")
    for qb in range(4): F.append(dict(t=f's_add_u32 s{sQ[qb]}, s{s_out}, {2*qb*57344}', lo=(N-8)*4, c=1))
    def pack(ip, qb):
        a = ACC + (2*ip*4+qb)*4; b = ACC + ((2*ip+1)*4+qb)*4
        o = [f'v_cvt_pk_bf16_f32 v{a}, v{a}, v{a+1}', f'v_cvt_pk_bf16_f32 v{a+1}, v{a+2}, v{a+3}']
        if ip < 3:
            o += [f'v_cvt_pk_bf16_f32 v{a+2}, v{b}, v{b+1}', f'v_cvt_pk_bf16_f32 v{a+3}, v{b+2}, v{b+3}',
                  f'buffer_store_dwordx4 {vr(a)}, v{VO}, s[{srd_out}:{srd_out+3}], s{sQ[qb]} offen offset:{ip*512} {CO_}']
        else:
            o += [f'buffer_store_dwordx2 {vr(a,2)}, v{VO2}, s[{srd_out}:{srd_out+3}], s{sQ[qb]} offen {CO_}']
        return o
    for ip in range(2):
        for qb in range(4):
            for t in pack(ip, qb):
                F.append(dict(t=t, lo=(N - 7 + 2*ip + 1)*4 + qb + 5, c=1, chain='st', tag='pst'))
    F.sort(key=lambda f: f['lo'])
    interleave(S, m, F, cap=3)
    stamp(S, stamp_idx)
    for ip in (2, 3):
        for qb in range(4):
            for t in pack(ip, qb): S(t, tag='pst')
    return w_dma

def proj_lane_setup(S, LN_, I16, KG, WV, LT, VO, VO2, row_bytes, t0, t1):
    S(f's_mul_i32 s{sT1}, s{sW}, 224')
    for n in range(7):
        S(f'v_add_u32 v{t0}, {64*n}, v{LN_}')
        S(f'v_mul_u32_u24 v{t1}, 4682, v{t0}')
        S(f'v_lshrrev_b32 v{t1}, 16, v{t1}')
        S(f'v_mul_u32_u24 v{WV+n}, {row_bytes - 224}, v{t1}')
        S(f'v_lshl_add_u32 v{WV+n}, v{t0}, 4, v{WV+n}')
        S(f'v_add_u32 v{WV+n}, s{sT1}, v{WV+n}')
    S(f'v_lshrrev_b32 v{t0}, 2, v{I16}')
    S(f'v_lshl_add_u32 v{t0}, v{KG}, 2, v{t0}')
    S(f'v_mul_u32_u24 v{t0}, 224, v{t0}')
    S(f'v_and_b32 v{t1}, 3, v{I16}')
    S(f'v_lshl_add_u32 v{LT}, v{t1}, 3, v{t0}')
    S(f'v_lshrrev_b32 v{t0}, 3, v{I16}')
    S(f'v_mul_u32_u24 v{t0}, 57344, v{t0}')
    S(f'v_and_b32 v{t1}, 7, v{I16}')
    S(f'v_lshl_add_u32 v{t1}, v{KG}, 3, v{t1}')
    S(f'v_lshl_add_u32 v{VO}, v{t1}, 4, v{t0}')
    S(f'v_lshl_add_u32 v{VO2}, v{t1}, 3, v{t0}')
    S(f'v_add_u32 v{VO2}, 1536, v{VO2}')

def gen_k2_full(debug=None):
    P, S = gen_k2(debug)
    LN_, I16, KG = 16, 17, 18
    WV = 20; LT = 27; VO = 28; VO2 = 29; L16 = [30, 31, 32]; RV = [33, 34, 35]
    XW, XR, t0, t1 = 36, 37, 38, 39
    SC = 40
    MLW, MLR = 0, 1
    for qb in range(4): S(f'v_add_f32 v{NM+4*qb+1}, v{L_+qb}, v{PS+qb}')
    S(f'v_mbcnt_lo_u32_b32 v{LN_}, -1, 0')
    S(f'v_mbcnt_hi_u32_b32 v{LN_}, -1, v{LN_}')
    S(f's_lshl_b32 s{sT1}, s{sW}, 11'); S(f's_add_u32 s{sT1}, s{sT1}, {3*SLOT}')
    S(f'v_lshlrev_b32 v{MLW}, 3, v{LN_}')
    S(f'v_add_u32 v{MLW}, s{sT1}, v{MLW}')
    for qb in range(4): S(f'ds_write_b64 v{MLW}, {vr(NM+4*qb,2)} offset:{qb*512}')
    S(f'v_xor_b32 v{MLR}, 2048, v{MLW}')
    S.waittag('V')
    S('s_waitcnt lgkmcnt(0)')
    S('s_barrier')
    jmap = list(range(8, 16)) + list(range(8))
    for qb in range(4): S(f'ds_read_b64 {vr(NM+4*qb+2,2)}, v{MLR} offset:{qb*512}')
    for f in range(16, 16 + AHEAD):
        for t in v_read(f, jmap): S(t)
    sR = [40, 41, 42]; sXW, sXR, sWB, sOUT = 43, 44, 45, 46
    SW1, SW2 = SX, SWQ
    U = Seq()
    U(f'v_lshlrev_b32 v{L16[0]}, 4, v{LN_}')
    U(f's_lshl_b32 s{sXW}, s{sW}, 15')
    U(f'v_add_u32 v{XW}, s{sXW}, v{L16[0]}')
    n_early = len(U.l)
    U(f'v_min_u32 v60, 55, v{LN_}'); U('v_lshlrev_b32 v60, 2, v60')
    U(f's_mov_b32 s{sT2}, {WS_FL + 3*4096}')
    U(f'buffer_load_dword v61, v60, s[{SMOD}:{SMOD+3}], s{sT2} offen sc0 sc1')
    for qb in range(4):
        n0, l0, n1, l1 = NM+4*qb, NM+4*qb+1, NM+4*qb+2, NM+4*qb+3
        U(f'v_min_f32 v{t0}, v{n0}, v{n1}')
        U(f'v_sub_f32 v{n0}, v{t0}, v{n0}')
        U(f'v_sub_f32 v{n1}, v{t0}, v{n1}')
        U(f'v_exp_f32 v{n0}, v{n0}')
        U(f'v_exp_f32 v{n1}, v{n1}')
        U(f'v_mul_f32 v{l0}, v{l0}, v{n0}')
        U(f'v_fmac_f32 v{l0}, v{l1}, v{n1}')
        if qb == 3: n_ml = len(U.l)
        allreduce_kg(U, l0, l1, 'v_add_f32')
        U(f'v_rcp_f32 v{l0}, v{l0}')
        U(f'v_mul_f32 v{SC+4*qb}, v{n0}, v{l0}')
        U(f'v_mul_f32 v{SC+4*qb+1}, v{n0}, v{l0}')
        U(f'v_mul_f32 v{SC+4*qb+2}, v{n1}, v{l0}')
        U(f'v_mul_f32 v{SC+4*qb+3}, v{n1}, v{l0}')
    U(f'v_and_b32 v{I16}, 15, v{LN_}')
    U(f'v_lshrrev_b32 v{KG}, 4, v{LN_}')
    proj_lane_setup(U, LN_, I16, KG, WV, LT, VO, VO2, 896, t0, t1)
    U(f's_xor_b32 s{sXR}, s{sXW}, {SLOT}')
    U(f's_lshl_b32 s{sR[0]}, s{sW}, 13'); U(f's_add_u32 s{sR[0]}, s{sR[0]}, {4*SLOT}')
    U(f's_add_u32 s{sR[1]}, s{sXR}, 16384'); U(f's_add_u32 s{sR[2]}, s{sXR}, {16384+7168}')
    U(f's_mul_i32 s{sWB}, s{sG}, {512*896}')
    U(f's_mul_i32 s{sOUT}, s{sRB}, {8*57344}')
    U(f's_mul_i32 s{sT1}, s{sG}, 7168'); U(f's_add_u32 s{sOUT}, s{sOUT}, s{sT1}')
    U(f's_mul_i32 s{sT1}, s{sW}, 1792'); U(f's_add_u32 s{sOUT}, s{sOUT}, s{sT1}')
    for k in range(3): U(f'v_add_u32 v{RV[k]}, s{sR[k]}, v{LT}')
    U(f'v_add_u32 v{L16[1]}, 65536, v{L16[0]}')
    U(f'v_add_u32 v{XR}, s{sXR}, v{L16[0]}')
    srd(U, SW1, sPTR+12, SZ['w1']); srd(U, SW2, sPTR+14, SZ['w2'])
    U(f's_lshl_b32 s{sT2}, s{sW}, 6'); U(f'v_add_u32 v{t0}, s{sT2}, v{LN_}')
    if (OPT.get('k4map', 2) == 1 or OPT.get('fuse', 1)):
        sh, nthr, gmul, w2b = 3, 112, 448, 7*896
        U(f's_mov_b32 s{sDK}, s{sG}')
    else:
        sh, nthr, gmul, w2b = 4, 224, 896, 14*896
        U(f's_and_b32 s{sDK}, s{sG}, 3')
    U(f'v_lshrrev_b32 v{t1}, {sh}, v{t0}'); U(f'v_mul_u32_u24 v{t1}, 3584, v{t1}')
    U(f'v_and_b32 v56, {(1<<sh)-1}, v{t0}'); U(f'v_lshl_add_u32 v{t1}, v56, 6, v{t1}')
    U(f'v_cmp_gt_u32 vcc, {nthr}, v{t0}'); U(f'v_mov_b32 v57, 0x7fffffff'); U(f'v_cndmask_b32 v{t1}, v57, v{t1}, vcc')
    U(f's_mul_i32 s{sT2}, s{sRB}, {14*3584}'); U(f's_mul_i32 s{sT3}, s{sDK}, {gmul}'); U(f's_add_u32 s{sT2}, s{sT2}, s{sT3}')
    U(f'buffer_load_dword v58, v{t1}, s[{SW1}:{SW1+3}], s{sT2} offen')
    U(f'v_lshlrev_b32 v{t0}, 6, v{t0}'); U(f'v_cndmask_b32 v{t0}, v57, v{t0}, vcc')
    U(f's_lshl_b32 s{sT2}, s{sDK}, 5'); U(f's_add_u32 s{sT2}, s{sT2}, s{sRB}'); U(f's_mul_i32 s{sT2}, s{sT2}, {w2b}')
    U(f'buffer_load_dword v59, v{t0}, s[{SW2}:{SW2+3}], s{sT2} offen')
    F = []
    for n in range(16 - AHEAD):
        for k, t in enumerate(v_read(16 + n + AHEAD, jmap)): F.append(dict(t=t, lo=n*4 + k, hi=n*4 + k, c=1))
    for n in range(16): F.append(dict(t=[], lo=n*4+3, hi=n*4+3, c=1))
    F.append(dict(t=f'v_mov_b32 v{t1}, v{NM+15}', lo=6, hi=6, c=1))
    F.append(dict(t='s_barrier', lo=6, hi=6, c=1))
    for gi, (n, qb) in enumerate(B_ORDER()[:32]):
        if True:
            g = gi + 7
            F.append(dict(t=f'ds_write_b128 v{XW}, {ar(Or(8+n,qb))} offset:{(n*4+qb)*1024}', lo=g, hi=g, c=1))
    for ins in U.l: F.append(dict(t=ins.text, lo=0, c=2 if ins.kind == 'trans' else 1, chain='u'))
    interleave(S, mfma_B(1, jmap=jmap), F, cap=3)
    stamp(S, 6)
    S('s_waitcnt lgkmcnt(0)')
    S('s_barrier')
    S(f's_load_dwordx2 s[{sPTR+2}:{sPTR+3}], s[0:1], {KA["b1"]}')
    S(f's_load_dwordx2 s[{sPTR+8}:{sPTR+9}], s[0:1], {KA["b2"]}')
    S(f's_load_dwordx2 s[{sPTR+6}:{sPTR+7}], s[0:1], {KA["out"]}')
    RB = 128
    for jj in range(8):
        for qb in range(4):
            S(f'ds_read_b128 {vr(RB+(jj*4+qb)*4)}, v{XR} offset:{(jj*4+qb)*1024}')
    def wdma(k):
        for n in range(7):
            S(f's_add_u32 m0, s{sR[k]}, {n*1024}')
            if n == 0: S(f's_add_u32 s{sT1}, s{sWB}, {k*32*896}')
            S(f'buffer_load_dwordx4 v{WV+n}, s[{SWO}:{SWO+3}], s{sT1} offen lds', tag=f'wo{k}')
    wdma(0)
    n = 0
    for u in range(4):
        for qb in range(4):
            t = 64 + 12*(n % 4); n += 1
            for hlf in range(2):
                jj = 2*u + hlf
                o = t + 4*hlf
                for r in range(4): S(f'v_accvgpr_read_b32 v{o+r}, a{Or(jj,qb)+r}')
                rb = RB + (jj*4+qb)*4
                for k in range(2): S(f'v_pk_mul_f32 {vr(o+2*k,2)}, {vr(o+2*k,2)}, {vr(SC+4*qb,2)}')
                for k in range(2): S(f'v_pk_fma_f32 {vr(o+2*k,2)}, {vr(rb+2*k,2)}, {vr(SC+4*qb+2,2)}, {vr(o+2*k,2)}')
            for k in range(4): S(f'v_cvt_pk_bf16_f32 v{t+8+k}, v{t+2*k}, v{t+2*k+1}')
            S(f'ds_write_b128 v{XR}, {vr(t+8)} offset:{(u*4+qb)*1024}')
            if u == 1 and qb == 0:
                S(f'v_mov_b32 v{t0}, v{RB+127}')
                wdma(1)
            if u == 2 and qb == 0: wdma(2)
            if debug == 'o':
                if n == 1:
                    S(f's_lshl_b32 s{sT2}, s2, 2'); S(f's_add_u32 s{sT2}, s{sT2}, s{sW}'); S(f's_lshl_b32 s{sT2}, s{sT2}, 14')
                S(f'buffer_store_dwordx4 {vr(t+8)}, v{L16[0]}, s[{SDBG}:{SDBG+3}], s{sT2} offen')
                S(f's_add_u32 s{sT2}, s{sT2}, 1024')
                S('s_waitcnt vmcnt(0)')
    S(f'v_cmp_ne_u32 vcc, s{sNON}, v61')
    S('s_cbranch_vccz L_init_ok')
    X = Hidden(S)
    X(f's_mov_b32 s{sT2}, {WS_FL + 3*4096}')
    def ib():
        X(f'buffer_load_dword v61, v60, s[{SMOD}:{SMOD+3}], s{sT2} offen sc0 sc1')
        X('s_waitcnt vmcnt(0)')
        X(f'v_cmp_ne_u32 vcc, s{sNON}, v61')
    spin(X, 'init', ib, 's_cbranch_vccz L_init_ok')
    X('L_init_ok:')
    S('s_waitcnt lgkmcnt(0)')
    S('s_barrier')
    stamp(S, 7)
    def baddr(k, qb):
        a = ((k >> 2) ^ 1)*SLOT + ((k & 3)*4 + qb)*1024
        return L16[a // 65536], a % 65536
    import tail
    TR = dict(LN_=LN_, I16=I16, KG=KG, WV=WV, LT=LT, VO=VO, VO2=VO2, L16=L16, sOUT=sOUT)
    U2 = Seq(); tail.tail_setup(U2, TR)
    proj_out(S, 16, baddr, SWO, sWB, 896, sR, RV, WV, 128, SP1, sOUT, VO, VO2, 3, 'wo', BF=64, AF=96, extra=U2)
    if OPT.get('fuse', 1):
        if STAMPS['on']:
            S('s_waitcnt lgkmcnt(0)')
            for i in range(9): S(f'v_mov_b32 v{240+i}, s{ST0+2*i}'); S(f'v_accvgpr_write_b32 a{i}, v{240+i}')
        STAMPS['phase'] = 1
        tail.gen_tail(P, S, dict(LN_=LN_, I16=I16, KG=KG, WV=WV, LT=LT, VO=VO, VO2=VO2, L16=L16, sOUT=sOUT))
        if STAMPS['on']:
            S('s_waitcnt vmcnt(0)')
            stamp(S, 6)
            stamp_flush(S, 11, 3, sW, sPTR+10)
            if OPT.get('amp2'):
                ia, ib = OPT['amp2']
                S(f's_sub_u32 s11, s{ST0+2*ib}, s{ST0+2*ia}')
            for i in range(9): S(f'v_accvgpr_read_b32 v2, a{i}'); S(f'v_readfirstlane_b32 s{ST0+2*i}, v2')
            stamp_flush(S, 11, 1, sW, sPTR+10)
            if OPT.get('amp') or OPT.get('amp2'):
                ia, ib = OPT.get('amp', (0, 0))
                S('s_cmp_lg_u32 s2, 0'); S('s_cbranch_scc1 L_k2_end')
                S('s_memrealtime s[12:13]')
                S('s_waitcnt lgkmcnt(0)')
                S(f's_sub_u32 s10, {"s12" if ib is None else f"s{ST0+2*ib}"}, s{ST0+2*ia}')
                if OPT.get('amp2'): S('s_mov_b32 s10, s11')
                S('s_lshl_b32 s10, s10, 3'); S('s_min_u32 s10, s10, 60000'); S('s_add_u32 s10, s10, s12')
                S('L_amp:'); S('s_memrealtime s[14:15]'); S('s_waitcnt lgkmcnt(0)')
                S('s_sub_u32 s16, s10, s14'); S('s_cmp_gt_i32 s16, 0'); S('s_cbranch_scc1 L_amp')
    else:
        if STAMPS['on']: S('s_waitcnt vmcnt(0)')
        stamp(S, 9)
        stamp_flush(S, 10, 1, sW, sPTR+10)
    S('L_k2_end:')
    S('s_endpgm')
    X = P.outofline()
    for i, (lab, buf) in enumerate(RARE.items()):
        X(f'L_rare_{lab}:')
        X(f's_mov_b32 s{sRET}, {i}')
        X(f's_branch L_renorm_{buf}')
    for buf in range(2):
        X(f'L_renorm_{buf}:')
        X('s_nop 15')
        renorm(X, buf, False)
        X('s_nop 3')
        mine = [(i, lab) for i, (lab, b) in enumerate(RARE.items()) if b == buf]
        mine.sort(key=lambda x: x[1] == 'b')
        for i, lab in mine[:-1]:
            X(f's_cmp_eq_u32 s{sRET}, {i}')
            X(f's_cbranch_scc1 L_back_{lab}')
        if mine[-1][1] == 'b': X(f's_cmp_lt_u32 s{sCNT}, 13')
        X(f's_branch L_back_{mine[-1][1]}')
    return P.finalize(align=OPT.get('align', 1)), dict(name='k2_kernel', grid=256, block=256, lds=163840, vgpr=512, sgpr=102, accum=256)
```

```python
from k2e import *

CO = 'sc0 sc1'
SFL = 72
SPIN_MAX = 1 << 16

def publish(S, k, VZ, VONE, tag):
    if k == 1:
        S(f's_lshr_b32 s{sT0}, s{sG}, 1'); S(f's_and_b32 s{sT1}, s{sG}, 1'); S(f's_lshl_b32 s{sT1}, s{sT1}, 2'); S(f's_add_u32 s{sT1}, s{sT1}, s{sW}')
    else:
        S(f's_mov_b32 s{sT0}, s{sW}'); S(f's_mov_b32 s{sT1}, s{sG}')
    S(f's_lshl_b32 s{sT0}, s{sT0}, 7'); S(f's_lshl_b32 s{sT1}, s{sT1}, 2'); S(f's_add_u32 s{sT0}, s{sT0}, s{sT1}')
    S(f's_lshl_b32 s{sT1}, s{sRB}, 9'); S(f's_add_u32 s{sT0}, s{sT0}, s{sT1}'); S(f's_add_u32 s{sT0}, s{sT0}, {k*16384}')
    S(f'v_mov_b32 v{VZ}, 0'); S(f'v_mov_b32 v{VONE}, s{sNON}')
    S.waittag(tag)
    S('s_mov_b64 exec, 1')
    S(f'buffer_store_dword v{VONE}, v{VZ}, s[{SFL}:{SFL+3}], s{sT0} offen {CO}')
    S('s_mov_b64 exec, -1')

def await_flags(P, S, k, VA, VD):
    S(f's_lshl_b32 s{sT0}, s{sRB}, 9'); S(f's_lshl_b32 s{sT1}, s{sW}, 7'); S(f's_add_u32 s{sT0}, s{sT0}, s{sT1}')
    S(f's_add_u32 s{sT0}, s{sT0}, {k*16384}')
    def body():
        S(f'buffer_load_dword v{VD}, v{VA}, s[{SFL}:{SFL+3}], s{sT0} offen {CO}')
        S('s_waitcnt vmcnt(0)')
        S(f'v_cmp_ne_u32 vcc, s{sNON}, v{VD}')
    spin(S, f'poll{k}', body, f's_cbranch_vccz L_polled{k}', sleep=OPT.get('tsleep', 1))
    S(f'L_polled{k}:')

def tail_setup(S, R):
    LN_, I16, KG, WV, LT, VO, VO2, L16 = R['LN_'], R['I16'], R['KG'], R['WV'], R['LT'], R['VO'], R['VO2'], R['L16']
    SW1, SW2 = SX, SWQ
    SXX, SMD, SB_, SY, SP2 = 12, 16, 24, 28, 76
    sOUT = R['sOUT']
    Q8, K8, GH, PA, PB, XA, MA, FA, STW, STR, MSK = 2, 3, 4, 5, 6, 7, 8, 9, 10, 11, 12
    t0, t1, t2, t3 = 56, 57, 58, 59
    PR, AC = 64, 40
    XR, GA, CB, SBv = 128, 136, 152, 168
    X2 = 240
    sRG, sPO, sPB, sG1, sYG, sYL = 52, 53, 55, 43, 44, 61
    sRr = [47, 48, 49, 50]; sWB2 = 51
    D1 = 60; LA = [61, 62, 63, 1]; RV = [36, 37, 38, 39]; HB = 19
    srd(S, SFL, sPTR+10, 3*16384, add=WS_FW)
    srd(S, SXX, sPTR, SZ['x']); srd(S, SMD, sPTR+10, 6*448*4, add=WS_MOD or None)
    srd(S, SY, sPTR+10, 2048*448*2, add=WS_Y); srd(S, SP2, sPTR+10, 256*57344, add=WS_P2)
    S(f'v_and_b32 v{Q8}, 7, v{LN_}'); S(f'v_bfe_u32 v{K8}, v{LN_}, 3, 2'); S(f'v_lshrrev_b32 v{GH}, 5, v{LN_}')
    S(f'v_and_b32 v{t0}, 31, v{LN_}')
    S(f'v_lshlrev_b32 v{t1}, 4, v{t0}')
    S(f'v_lshl_add_u32 v{PA}, v{GH}, 10, v{t1}')
    S(f'v_add_u32 v{t1}, 512, v{t1}')
    S(f'v_lshlrev_b32 v{t2}, 3, v{t0}'); S(f'v_add_u32 v{t2}, 1536, v{t2}')
    S(f'v_cmp_eq_u32 vcc, 0, v{GH}')
    S(f'v_cndmask_b32 v{PB}, v{t2}, v{t1}, vcc')
    S(f'v_cndmask_b32 v{MSK}, 0, 1.0, vcc'); S(f'v_mov_b32 v{MSK+1}, v{MSK}')
    S(f'v_mul_u32_u24 v{XA}, 896, v{Q8}'); S(f'v_lshl_add_u32 v{XA}, v{K8}, 3, v{XA}'); S(f'v_lshl_add_u32 v{XA}, v{GH}, 7, v{XA}')
    S(f'v_lshlrev_b32 v{MA}, 4, v{K8}'); S(f'v_lshl_add_u32 v{MA}, v{GH}, 8, v{MA}')
    S(f'v_lshlrev_b32 v{FA}, 2, v{Q8}')
    S(f'v_lshlrev_b32 v{STR}, 5, v{Q8}'); S(f'v_add_u32 v{STR}, {32768+24576}, v{STR}'); S(f's_lshl_b32 s{sT3}, s{sW}, 3'); S(f'v_add_u32 v{STW}, s{sT3}, v{STR}')
    S(f's_lshl_b32 s{sRG}, s{sRB}, 3'); S(f's_add_u32 s{sRG}, s{sRG}, s{sG}')
    S(f's_mul_i32 s{sPO}, s{sRG}, 57344'); S(f's_mul_i32 s{sT3}, s{sW}, 1792'); S(f's_add_u32 s{sPO}, s{sPO}, s{sT3}')
    S(f's_lshl_b32 s{sPB}, s{sW}, 15'); S(f's_add_u32 s{sPB}, s{sPB}, 32768')
    S(f's_mul_i32 s{sG1}, s{sG}, 448'); S(f's_andn2_b32 s{sG1}, s{sG1}, 127')
    S(f's_lshl_b32 s{sYL}, s{sW}, 10')
    S(f's_mul_i32 s{sYG}, s{sRB}, 57344'); S(f's_add_u32 s{sYG}, s{sYG}, s{sYL}')
    S(f'v_lshrrev_b32 v{t0}, 3, v{LN_}')
    S(f'v_and_b32 v{t2}, 6, v{t0}'); S(f'v_xor_b32 v{t2}, v{t2}, v{Q8}')
    S(f'v_mul_u32_u24 v{D1}, 3584, v{t0}'); S(f'v_lshl_add_u32 v{D1}, v{t2}, 4, v{D1}')
    S(f's_lshl_b32 s{sT3}, s{sW}, 7'); S(f'v_add_u32 v{D1}, s{sT3}, v{D1}')
    S(f'v_and_b32 v{t0}, 1, v{KG}'); S(f'v_lshlrev_b32 v{t0}, 2, v{t0}')
    S(f'v_lshrrev_b32 v{t1}, 2, v{I16}'); S(f'v_add_u32 v{t0}, v{t0}, v{t1}')
    S(f'v_lshrrev_b32 v{t1}, 1, v{t0}')
    S(f'v_and_b32 v{t2}, 3, v{I16}'); S(f'v_lshlrev_b32 v{t2}, 3, v{t2}')
    S(f'v_lshl_add_u32 v{t2}, v{t0}, 7, v{t2}')
    S(f'v_lshrrev_b32 v{t3}, 1, v{KG}'); S(f'v_lshl_add_u32 v{t2}, v{t3}, 10, v{t2}')
    S(f'v_add_u32 v{t2}, s{sPB}, v{t2}')
    for jj in range(4):
        S(f'v_xor_b32 v{t3}, {jj}, v{t1}')
        S(f'v_lshl_add_u32 v{LA[jj]}, v{t3}, 5, v{t2}')
    S(f'v_add_u32 v{L16[2]}, 131072, v{L16[0]}')
    for k in range(4): S(f's_add_u32 s{sRr[k]}, s{sPB}, {k*7168}')
    for k in range(4): S(f'v_add_u32 v{RV[k]}, s{sRr[k]}, v{LT}')
    S(f's_mul_i32 s{sWB2}, s{sG}, {224*896}')
    S(f's_and_b32 s{sT3}, s{sG}, 1'); S(f's_lshl_b32 s{sT3}, s{sT3}, 12'); S(f'v_add_u32 v{HB}, s{sT3}, v{L16[0]}')

def gen_tail(P, S, R):
    LN_, I16, KG, WV, LT, VO, VO2, L16 = R['LN_'], R['I16'], R['KG'], R['WV'], R['LT'], R['VO'], R['VO2'], R['L16']
    SW1, SW2 = SX, SWQ
    SXX, SMD, SB_, SY, SP2 = 12, 16, 24, 28, 76
    sOUT = R['sOUT']
    Q8, K8, GH, PA, PB, XA, MA, FA, STW, STR, MSK = 2, 3, 4, 5, 6, 7, 8, 9, 10, 11, 12
    t0, t1, t2, t3 = 56, 57, 58, 59
    PR, AC = 64, 40
    XR, GA, CB, SBv = 128, 136, 152, 168
    X2 = 240
    sRG, sPO, sPB, sG1, sYG, sYL = 52, 53, 55, 43, 44, 61
    sRr = [47, 48, 49, 50]; sWB2 = 51
    D1 = 60; LA = [61, 62, 63, 1]; RV = [36, 37, 38, 39]; HB = 19
    def flag_addr(k):
        S(f's_lshl_b32 s{sT0}, s{sRB}, 9'); S(f's_lshl_b32 s{sT1}, s{sW}, 7'); S(f's_add_u32 s{sT0}, s{sT0}, s{sT1}')
        S(f's_add_u32 s{sT0}, s{sT0}, {k*16384}')
    def rowbase(k, rg):
        if k < 12: return 112*(k // 3) + 32*(k % 3) + 8*rg
        u = k - 12
        return 224*u + 96 + 8*rg if rg < 2 else 224*u + 208 + 8*(rg - 2)
    def w1_dma(k):
        out = []
        for rg in range(4):
            pre = [f's_add_u32 m0, s{sPB}, {((k+4) % 6)*4096 + rg*1024}', f's_add_u32 s{sT2}, s{sG1}, {rowbase(k, rg)*3584}']
            out.append(dict(pre=pre, t=[f'buffer_load_dwordx4 v{D1}, s[{SW1}:{SW1+3}], s{sT2} offen lds'], post=[], tag=f'w1{k}'))
        return out
    def reduce_partials(srdp, k, params, after, stamp_idx):
        X = Hidden(S)
        sDN, sNEW, sOWN = sRET, 45, 40
        flag_addr(k)
        S(f'buffer_load_dword v{t0}, v{FA}, s[{SFL}:{SFL+3}], s{sT0} offen {CO}', tag='poll')
        params()
        S(f's_lshl_b32 s{sT2}, s{sG}, 2'); S(f's_add_u32 s{sT2}, s{sT2}, s{sT0}')
        S(f's_lshl_b32 s{sOWN}, 1, s{sG}')
        S(f's_mov_b32 s{sDN}, 0'); S(f's_mov_b32 s{sT1}, 65536')
        S(f'v_mov_b32 v14, 0'); S(f'v_mov_b32 v15, s{sNON}')
        S(f'v_mov_b32 v{t2}, 0x00003f80'); S(f'v_mov_b32 v{t3}, 0x3f800000')
        S.waittag('pst')
        S('s_mov_b64 exec, 1')
        S(f'buffer_store_dword v15, v14, s[{SFL}:{SFL+3}], s{sT2} offen {CO}')
        S('s_mov_b64 exec, -1')
        stamp(S, stamp_idx)
        S.waittag('poll')
        S(f's_branch L_poll{k}_in')
        X(f'L_poll{k}_l:')
        X(f's_sleep {OPT.get("tsleep", 1)}')
        X(f'buffer_load_dword v{t0}, v{FA}, s[{SFL}:{SFL+3}], s{sT0} offen {CO}')
        X('s_waitcnt vmcnt(0)')
        X(f'L_poll{k}_in:')
        X(f'v_cmp_eq_u32 vcc, s{sNON}, v{t0}')
        X(f's_sub_u32 s{sT1}, s{sT1}, 1')
        X(f's_cmp_eq_u32 s{sT1}, 0'); X(f's_cselect_b32 s{sNEW}, -1, vcc_lo')
        X(f's_or_b32 s{sNEW}, s{sNEW}, s{sOWN}')
        X(f's_andn2_b32 s{sNEW}, s{sNEW}, s{sDN}')
        for g in range(8):
            X(f's_bitcmp0_b32 s{sNEW}, {g}'); X(f's_cbranch_scc1 L_pr{k}_{g}')
            X(f's_add_u32 s{sT2}, s{sPO}, {g*7168}')
            X(f'buffer_load_dwordx4 {vr(PR+8*g)}, v{PA}, s[{srdp}:{srdp+3}], s{sT2} offen {CO}')
            X(f'buffer_load_dwordx4 {vr(PR+8*g+4)}, v{PB}, s[{srdp}:{srdp+3}], s{sT2} offen {CO}')
            X(f'L_pr{k}_{g}:')
        X(f's_or_b32 s{sDN}, s{sDN}, s{sNEW}'); X(f's_and_b32 s{sDN}, s{sDN}, 0xff')
        X(f's_cmp_lg_u32 s{sDN}, 0xff'); X(f's_cbranch_scc1 L_poll{k}_l')
        n = after()
        S(f's_waitcnt vmcnt({n})')
        for d in range(8):
            S(f'v_lshlrev_b32 v{AC+2*d}, 16, v{PR+d}'); S(f'v_and_b32 v{AC+2*d+1}, 0xffff0000, v{PR+d}')
        for g in range(1, 8):
            for d in range(8):
                S(f'v_dot2c_f32_bf16 v{AC+2*d}, v{PR+8*g+d}, v{t2}')
                S(f'v_dot2c_f32_bf16 v{AC+2*d+1}, v{PR+8*g+d}, v{t3}')
        S('s_nop 2')
    BRAW = 184
    def params0():
        srd(S, SB_, sPTR+2, SZ['b1'])
        S(f's_mul_i32 s{sT2}, s{sRG}, 7168'); S(f's_mul_i32 s{sT3}, s{sW}, 224'); S(f's_add_u32 s{sT2}, s{sT2}, s{sT3}')
        for i in range(4): S(f'buffer_load_dwordx2 {vr(XR+2*i,2)}, v{XA}, s[{SXX}:{SXX+3}], s{sT2} offen offset:{32*i}')
        S(f's_mul_i32 s{sT3}, s{sW}, 448')
        for arr, idx in ((GA, 2), (CB, 4), (SBv, 3)):
            S(f's_add_u32 s{sT2}, s{sT3}, {idx*1792}')
            for i in range(4): S(f'buffer_load_dwordx4 {vr(arr+4*i)}, v{MA}, s[{SMD}:{SMD+3}], s{sT2} offen offset:{64*i} {MODCO()}')
        S(f's_lshl_b32 s{sT2}, s{sW}, 7'); S(f's_add_u32 s{sT2}, s{sT2}, s{sG1}')
        S(f'v_lshlrev_b32 v{t1}, 3, v{KG}')
        for jj in range(4): S(f'buffer_load_dwordx2 {vr(BRAW+2*jj,2)}, v{t1}, s[{SB_}:{SB_+3}], s{sT2} offen offset:{32*jj}')
        S('s_barrier')
    NW1 = OPT.get('w1pre', 3)
    def after0():
        for k in range(NW1): emit_groups(S, w1_dma(k))
        return 4*NW1
    def red3(x, t):
        S(f'v_add_f32_dpp v{x}, v{x}, v{x} row_ror:8 row_mask:0xf bank_mask:0xf')
        allreduce_kg(S, x, t, 'v_add_f32')
    def layernorm16(X, off):
        a, b, m, q = 14, 15, PR+8, PR+9
        for k in (6, 7): S(f'v_pk_mul_f32 {vr(X+2*k,2)}, {vr(X+2*k,2)}, {vr(MSK,2)}')
        S(f'v_pk_add_f32 v[14:15], {vr(X,2)}, {vr(X+2,2)}')
        for k in range(2, 8): S(f'v_pk_add_f32 v[14:15], v[14:15], {vr(X+2*k,2)}')
        S('v_add_f32 v14, v14, v15')
        red3(14, 15)
        S(f'v_mul_f32 v{m}, {f32(1.0/112)}, v14')
        S(f'v_sub_f32 v14, 0, v{m}'); S(f'v_sub_f32 v15, 0, v{m}')
        for k in range(8): S(f'v_pk_add_f32 {vr(X+2*k,2)}, {vr(X+2*k,2)}, v[14:15]')
        for k in (6, 7): S(f'v_pk_mul_f32 {vr(X+2*k,2)}, {vr(X+2*k,2)}, {vr(MSK,2)}')
        S(f'v_pk_mul_f32 v[14:15], {vr(X,2)}, {vr(X,2)}')
        for k in range(1, 8): S(f'v_pk_fma_f32 v[14:15], {vr(X+2*k,2)}, {vr(X+2*k,2)}, v[14:15]')
        S(f'v_add_f32 v{q}, v14, v15')
        red3(q, 15)
        S(f'ds_write_b64 v{STW}, {vr(m,2)} offset:{off}')
        S('s_waitcnt lgkmcnt(0)')
        S('s_barrier')
        S(f'ds_read_b128 {vr(PR)}, v{STR} offset:{off}')
        S(f'ds_read_b128 {vr(PR+4)}, v{STR} offset:{off+16}')
        mm = [PR, PR+2, PR+4, PR+6]; qq = [PR+1, PR+3, PR+5, PR+7]
        S(f'v_add_f32 v14, v{mm[0]}, v{mm[1]}'); S(f'v_add_f32 v15, v{mm[2]}, v{mm[3]}')
        S('v_add_f32 v14, v14, v15'); S(f'v_mul_f32 v14, {f32(0.25)}, v14')
        S(f'v_add_f32 v15, v{qq[0]}, v{qq[1]}'); S(f'v_add_f32 v15, v15, v{qq[2]}'); S(f'v_add_f32 v15, v15, v{qq[3]}')
        S(f'v_mov_b32 v{PR+11}, {f32(1e-5)}')
        S(f'v_fmac_f32 v{PR+11}, {f32(1.0/448)}, v15')
        for k in range(4):
            S(f'v_sub_f32 v{mm[k]}, v{mm[k]}, v14')
            S(f'v_mul_f32 v{mm[k]}, v{mm[k]}, v{mm[k]}')
            S(f'v_fmac_f32 v{PR+11}, {f32(0.25)}, v{mm[k]}')
        S(f'v_rsq_f32 v{PR+11}, v{PR+11}')
        S(f'v_sub_f32 v14, v{m}, v14')
        S(f'v_mul_f32 v14, v14, v{PR+11}'); S('v_mov_b32 v15, v14')
        S(f'v_mov_b32 v{PR+10}, v{PR+11}')
        for k in range(8): S(f'v_pk_fma_f32 {vr(X+2*k,2)}, {vr(X+2*k,2)}, {vr(PR+10,2)}, v[14:15]')
    reduce_partials(SP1, 0, params0, after0, 9)
    stamp(S, 10)
    S(f'v_cmp_eq_u32 vcc, 0, v{GH}')
    for e in range(12, 16): S(f'v_cndmask_b32 v{AC+e}, 0, v{AC+e}, vcc')
    for d in range(8):
        S(f'v_lshlrev_b32 v14, 16, v{XR+d}'); S(f'v_and_b32 v15, 0xffff0000, v{XR+d}')
        S(f'v_pk_fma_f32 {vr(AC+2*d,2)}, {vr(AC+2*d,2)}, {vr(GA+2*d,2)}, v[14:15]')
        S(f'v_pk_mul_f32 {vr(X2+2*d,2)}, {vr(AC+2*d,2)}, 1.0 op_sel_hi:[1,0]')
    for k in range(NW1, 6): emit_groups(S, w1_dma(k))
    layernorm16(AC, 0)
    for k in range(8): S(f'v_pk_fma_f32 {vr(AC+2*k,2)}, {vr(AC+2*k,2)}, {vr(CB+2*k,2)}, {vr(SBv+2*k,2)}')
    YA, YB = XR, XR+1
    S(f's_mul_i32 s{sT2}, s{sRB}, 57344')
    S(f's_lshr_b32 s{sT3}, s{sG}, 1'); S(f's_lshl_b32 s{sT3}, s{sT3}, 10'); S(f's_add_u32 s{sT2}, s{sT2}, s{sT3}')
    S(f's_and_b32 s{sT3}, s{sG}, 1'); S(f's_lshl_b32 s{sT3}, s{sT3}, 7'); S(f's_add_u32 s{sT2}, s{sT2}, s{sT3}')
    S(f'v_lshlrev_b32 v{YB}, 4, v{Q8}'); S(f'v_lshl_add_u32 v{YB}, v{K8}, 8, v{YB}')
    S(f'v_lshl_add_u32 v{YA}, v{GH}, 13, v{YB}')
    S(f's_mul_i32 s{sT0}, s{sW}, 12288'); S(f's_add_u32 s{sT0}, s{sT0}, s{sT2}')
    S(f's_add_u32 s{sT1}, s{sT0}, 4096')
    S(f's_lshr_b32 s{sT3}, s{sW}, 1'); S(f's_lshl_b32 s{sT3}, s{sT3}, 12'); S(f's_add_u32 s{sT2}, s{sT2}, s{sT3}')
    S(f's_lshl_b32 s{sT3}, s{sS}, 3'); S(f's_add_u32 s{sT2}, s{sT2}, s{sT3}'); S(f's_add_u32 s{sT2}, s{sT2}, {12*4096}')
    layernorm16(AC, 256)
    YP = GA
    for k in range(8): S(f'v_cvt_pk_bf16_f32 v{YP+k}, v{AC+2*k}, v{AC+2*k+1}')
    S(f'buffer_store_dwordx4 {vr(YP)}, v{YA}, s[{SY}:{SY+3}], s{sT0} offen {CO}', tag='yst')
    S('s_mov_b32 exec_hi, 0')
    S(f'buffer_store_dwordx4 {vr(YP+4)}, v{YB}, s[{SY}:{SY+3}], s{sT1} offen {CO}', tag='yst')
    S('s_mov_b32 exec_hi, -1'); S('s_mov_b32 exec_lo, 0')
    S(f'buffer_store_dwordx2 {vr(YP+4,2)}, v{YB}, s[{SY}:{SY+3}], s{sT2} offen {CO}', tag='yst')
    S('s_mov_b64 exec, -1')
    BI = 40
    for jj in range(4):
        S(f'v_lshlrev_b32 v{BI+4*jj}, 16, v{BRAW+2*jj}'); S(f'v_and_b32 v{BI+4*jj+1}, 0xffff0000, v{BRAW+2*jj}')
        S(f'v_lshlrev_b32 v{BI+4*jj+2}, 16, v{BRAW+1+2*jj}'); S(f'v_and_b32 v{BI+4*jj+3}, 0xffff0000, v{BRAW+1+2*jj}')
    publish(S, 1, t0, t1, 'yst')
    stamp(S, 0)
    await_flags(P, S, 1, FA, t0)
    YS = 64
    for k in range(14):
        S(f's_add_u32 s{sT2}, s{sYG}, {k*4096}')
        S(f'buffer_load_dwordx4 {vr(YS+4*k)}, v{L16[0]}, s[{SY}:{SY+3}], s{sT2} offen {CO}')
    S(f'v_add_u32 v{t0}, s{sYL}, v{L16[0]}')
    S(f'v_add_u32 v{t1}, s{sPB}, v{L16[0]}')
    for k in range(14):
        S(f'ds_write_b128 v{t0}, {vr(YS+4*k)} offset:{k*4096}' if k < 8 else f'ds_write_b128 v{t1}, {vr(YS+4*k)} offset:{26624 + (k-8)*1024}')
    def yaddr(k, qb):
        a = (k*4+qb)*1024 if k < 8 else 32768*(qb+1) + 26624 + (k-8)*1024
        return L16[a // 65536], a % 65536
    S('s_waitcnt lgkmcnt(0)')
    S('s_barrier')
    stamp(S, 1)
    ACC = 128; BF = 192; AF = 96
    def afr(n): return AF + 4*(n % 8)
    def bfr(k, qb): return BF + ((k % 3)*4 + qb)*4
    def a_reads(n):
        k, jj = n // 4, n % 4
        out = []
        if jj == 0: out.append(dict(waittag=f'w1{k}'))
        o = ((k+4) % 6)*4096
        out.append(dict(t=f'ds_read_b64_tr_b16 {vr(afr(n),2)}, v{LA[jj]} offset:{o}'))
        out.append(dict(t=f'ds_read_b64_tr_b16 {vr(afr(n)+2,2)}, v{LA[jj]} offset:{o+2048}'))
        return out
    def b_read(k, qb):
        a, o = yaddr(k, qb)
        return f'ds_read_b128 {vr(bfr(k,qb))}, v{a} offset:{o}'
    AH = 6
    for qb in range(4): S(b_read(0, qb))
    for n in range(AH):
        for f in a_reads(n):
            if 'waittag' in f: S.waittag(f['waittag'])
            else: S(f['t'])
    for qb in range(4): S(b_read(1, qb))
    def w2_dma(k):
        out = []
        for n in range(7):
            pre = [f's_add_u32 m0, s{sRr[k]}, {n*1024}']
            if n == 0: pre.append(f's_add_u32 s{sT2}, s{sWB2}, {k*32*896}')
            out.append(dict(pre=pre, t=[f'buffer_load_dwordx4 v{WV+n}, s[{SW2}:{SW2+3}], s{sT2} offen lds'], post=[], tag=f'w2{k}'))
        return out
    m = []; F = []
    for n in range(56):
        k, jj = n // 4, n % 4
        for qb in range(4):
            acc = vr(ACC + (jj*4+qb)*4)
            m.append(f'{MF} {acc}, {vr(afr(n))}, {vr(bfr(k,qb))}, {acc if k else vr(BI+4*jj)}')
        if n + AH < 56:
            for f in a_reads(n + AH):
                f.update(lo=n*4, c=1, chain='rd'); F.append(f)
        if k + 2 < 14: F.append(dict(t=b_read(k+2, jj), lo=n*4 + 2, c=1, chain='rd'))
    for k in range(8):
        for i, gr in enumerate(w1_dma(k + 6)):
            g = (k + 1)*16 + 4*i + 2
            F.append(dict(t=gr['pre'], lo=g-1, c=1, chain='dma'))
            F.append(dict(t=gr['t'], lo=g, c=2, tag=gr['tag'], chain='dma'))
    for kk, after in ((0, 9), (1, 11)):
        for i, gr in enumerate(w2_dma(kk)):
            g = (after + 1)*16 + 4*i + 2
            F.append(dict(t=gr['pre'], lo=g-1, c=1, chain='dma'))
            F.append(dict(t=gr['t'], lo=g, c=2, tag=gr['tag'], chain='dma'))
    F.sort(key=lambda f: f['lo'])
    interleave(S, m, F, cap=3)
    S('s_barrier')
    stamp(S, 2)
    K0 = -2.0 * 0.7978845608028654 * 1.4426950408889634
    K1 = K0 * 0.044715
    C = 40
    G = Seq()
    G(f'v_mov_b32 v{C}, {f32(K1)}'); G(f'v_mov_b32 v{C+1}, {f32(K1)}'); G(f'v_mov_b32 v{C+2}, {f32(K0)}'); G(f'v_mov_b32 v{C+3}, {f32(K0)}')
    G(f'v_mov_b32 v{C+4}, 1.0'); G(f'v_mov_b32 v{C+5}, 1.0')
    G(f's_lshl_b32 s{sT1}, s{sW}, 13')
    G(f'v_add_u32 v{t0}, s{sT1}, v{L16[0]}')
    n = 0
    for u in range(2):
        for qb in range(4):
            T = 64 + 16*(n % 4); n += 1
            src = [ACC + ((2*u + e // 2)*4 + qb)*4 + 2*(e % 2) for e in range(4)]
            for e in range(4): G(f'v_pk_mul_f32 {vr(T+2*e,2)}, {vr(src[e],2)}, {vr(src[e],2)}')
            for e in range(4): G(f'v_pk_fma_f32 {vr(T+2*e,2)}, {vr(T+2*e,2)}, {vr(C,2)}, {vr(C+2,2)}')
            for e in range(4): G(f'v_pk_mul_f32 {vr(T+2*e,2)}, {vr(T+2*e,2)}, {vr(src[e],2)}')
            for e in range(8): G(f'v_exp_f32 v{T+e}, v{T+e}')
            for e in range(4): G(f'v_pk_add_f32 {vr(T+2*e,2)}, {vr(T+2*e,2)}, {vr(C+4,2)}')
            for e in range(8): G(f'v_rcp_f32 v{T+e}, v{T+e}')
            for e in range(4): G(f'v_pk_mul_f32 {vr(T+2*e,2)}, {vr(T+2*e,2)}, {vr(src[e],2)}')
            for e in range(4): G(f'v_cvt_pk_bf16_f32 v{T+8+e}, v{T+2*e}, v{T+2*e+1}')
            G(f'ds_write_b128 v{t0}, {vr(T+8)} offset:{(u*4+qb)*1024}')
    merge_into(S, G, w2_dma(2) + w2_dma(3), every=12, start=4)
    S('s_waitcnt lgkmcnt(0)')
    S('s_barrier')
    stamp(S, 3)
    proj_out(S, 7, lambda k, qb: (HB, (k*4+qb)*1024), SW2, sWB2, 896, sRr, RV, WV, 128, SP2, sOUT, VO, VO2, 4, 'w2',
             BF=64, AF=96, stamp_idx=4)
    srd(S, SB_, sPTR+8, SZ['b2']); srd(S, SXX, sPTR+6, SZ['out'])
    B2, GB = 16, 24
    def params2():
        S(f's_mul_i32 s{sT3}, s{sW}, 224')
        S(f'v_lshlrev_b32 v{t1}, 3, v{K8}'); S(f'v_lshl_add_u32 v{t1}, v{GH}, 7, v{t1}')
        for i in range(4): S(f'buffer_load_dwordx2 {vr(B2+2*i,2)}, v{t1}, s[{SB_}:{SB_+3}], s{sT3} offen offset:{32*i}')
        S(f's_mul_i32 s{sT2}, s{sW}, 448'); S(f's_add_u32 s{sT2}, s{sT2}, {5*1792}')
        for i in range(4): S(f'buffer_load_dwordx4 {vr(GB+4*i)}, v{MA}, s[{SMD}:{SMD+3}], s{sT2} offen offset:{64*i} {MODCO()}')
    reduce_partials(SP2, 2, params2, lambda: 0, 5)
    for d in range(8):
        S(f'v_lshlrev_b32 v14, 16, v{B2+d}'); S(f'v_and_b32 v15, 0xffff0000, v{B2+d}')
        S(f'v_pk_add_f32 {vr(AC+2*d,2)}, {vr(AC+2*d,2)}, v[14:15]')
        S(f'v_pk_fma_f32 {vr(AC+2*d,2)}, {vr(AC+2*d,2)}, {vr(GB+2*d,2)}, {vr(X2+2*d,2)}')
        S(f'v_cvt_pk_bf16_f32 v{PR+d}, v{AC+2*d}, v{AC+2*d+1}')
    S(f's_mul_i32 s{sT2}, s{sRG}, 7168'); S(f's_add_u32 s{sT2}, s{sT2}, s{sT3}')
    for i in range(4):
        if i == 3: S('s_mov_b32 exec_hi, 0')
        S(f'buffer_store_dwordx2 {vr(PR+2*i,2)}, v{XA}, s[{SXX}:{SXX+3}], s{sT2} offen offset:{32*i}')

def MODCO(): return CO if OPT.get('front', 1) else ''
```

```python
import sys
from common import *
import k1, k2e
NAME = "adaLN_cond__gqa_block_cached__mixer_channel_mlp__prompt"
def header():
    ref = open(f'cdna_kernels/{NAME}.s.ref').read().split('\n')
    return [l for l in ref if l.startswith(';') and '@launch' not in l and 'Override launch' not in l and 'grid=ceil' not in l]
def build(kernels, path):
    out = header()
    if len(kernels) == 1 and kernels[0][1]['name'] == 'k2_kernel':
        d = kernels[0][1]; d['name'] = NAME + '_kernel'
        out.append(f'; @launch grid=({d["grid"]},1,1) block=({d["block"]},1,1) lds={d["lds"]}')
    else:
      for txt, d in kernels:
        out.append(f'; @launch kernel={d["name"]} grid=({d["grid"]},1,1) block=({d["block"]},1,1) lds={d["lds"]}')
    out.append('.amdgcn_target "amdgcn-amd-amdhsa--gfx950"'); out.append('.text')
    s = '\n'.join(out) + '\n'
    s += '.p2align 8\nL_code_begin:\n'
    for txt, d in kernels: s += kernel_header(d['name']) + txt
    s += 'L_code_end:\n.section .rodata,"a"\n'
    for txt, d in kernels: s += kernel_desc(d['name'], d['vgpr'], d['sgpr'], d['accum'])
    open(path, 'w').write(s)
if __name__ == '__main__':
    dbg = sys.argv[2] if len(sys.argv) > 2 else None
    if dbg == 'stamp':
        STAMPS['on'] = True; dbg = None
    ks = ([] if OPT.get('front', 1) else [k1.gen_k1()]) + [k2e.gen_k2_full(dbg)]
    try:
        import k345
        if not OPT.get('fuse', 1): ks += k345.gen_all()
    except ImportError:
        pass
    build(ks, sys.argv[1])
```
